```python
import torch

def _softmax(x, axis=-1):
    return torch.softmax(x, dim=axis)
def _gelu(x):
    return torch.nn.functional.gelu(x, approximate="tanh")
def _silu(x):
    return torch.nn.functional.silu(x)
def _sigmoid(x):
    return torch.sigmoid(x)
def _layernorm(x, axis=-1, eps=1e-5):
    m = x.mean(dim=axis, keepdim=True)
    v = x.var(dim=axis, keepdim=True, unbiased=False)
    return (x - m) / torch.sqrt(v + eps)
def _scatter_add(tgt, idx, src, axis=0):
    return tgt.clone().index_add_(axis, idx, src)
def _segment_sum(src, seg, n):
    out = torch.zeros((n,) + src.shape[1:], dtype=src.dtype)
    return out.index_add_(0, seg, src)
def _pad(x, pw):
    flat = tuple(v for pair in reversed(pw) for v in pair)
    return torch.nn.functional.pad(x, flat)

kernel_name = 'concat_heads__mha_block__softmax_full_mha__prompt'

def setup_inputs():

    _w = (lambda a: (lambda t: t.to(torch.bfloat16) if t.is_floating_point() else t)(torch.as_tensor(a)))
    def _A_setup():
        B, S, D, H = 1, 2048, 512, 32
        return {
            "x": _w((lambda *s: torch.randn(*s, dtype=torch.bfloat16) * 0.2)(B, S, D)),
            "wqkv": _w((lambda *s: torch.randn(*s, dtype=torch.bfloat16) * 0.2)(D, 3 * D)),
            "wo": _w((lambda *s: torch.randn(*s, dtype=torch.bfloat16) * 0.05)(D, D)),
        }
    _A_in = _A_setup()

    def _B_setup():
        B, S, D = 1, 2048, 512
        return {
            "x": _w((lambda *s: torch.randn(*s, dtype=torch.bfloat16) * 0.2)(B, S, D)),
            "wqkv": _w((lambda *s: torch.randn(*s, dtype=torch.bfloat16) * 0.2)(D, 3 * D)),
            "wo": _w((lambda *s: torch.randn(*s, dtype=torch.bfloat16) * 0.05)(D, D)),
        }
    _B_in = _B_setup()

    return {
        "A_x": _A_in["x"],
        "A_wqkv": _A_in["wqkv"],
        "A_wo": _A_in["wo"],
        "B_x": _B_in["x"],
        "B_wqkv": _B_in["wqkv"],
        "B_wo": _B_in["wo"],
    }

def reference(A_x, A_wqkv, A_wo, B_x, B_wqkv, B_wo):
    def _A_ref(x, wqkv, wo):
        B, S, D = x.shape
        H = 32
        Dh = D // H
        qkv = (lambda x, *d: x.permute(*d))((x @ wqkv).reshape(B, S, 3, H, Dh), 2, 0, 3, 1, 4)
        q, k, v = qkv[0], qkv[1], qkv[2]
        scores = torch.einsum("bhqd,bhkd->bhqk", q, k) * (Dh ** -0.5)
        p = _softmax(scores, axis=-1)
        o = torch.einsum("bhqk,bhkd->bhqd", p, v)
        return (lambda x, *d: x.permute(*d))(o, 0, 2, 1, 3).reshape(B, S, D) @ wo

    def _B_ref(x, wqkv, wo):
        B, S, D = x.shape
        H = 32; Dh = D // H
        qkv = (lambda x, *d: x.permute(*d))((x @ wqkv).reshape(B, S, 3, H, Dh), 2, 0, 3, 1, 4)
        q, k, v = qkv[0], qkv[1], qkv[2]
        scale = Dh ** -0.5
        scores = torch.einsum("bhqd,bhkd->bhqk", q, k) * scale
        p = _softmax(scores, axis=-1)
        o = torch.einsum("bhqk,bhkd->bhqd", p, v)
        return (lambda x, *d: x.permute(*d))(o, 0, 2, 1, 3).reshape(B, S, D) @ wo

    a = _A_ref(A_x, A_wqkv, A_wo)
    b = _B_ref(B_x, B_wqkv, B_wo)
    return torch.concatenate([a, b], axis=-1)
```

```python
import re

class Asm:
    def __init__(self):
        self.lines = []
    def __call__(self, s=""):
        for ln in s.split("\n"):
            self.lines.append(ln)
    def label(self, name):
        self.lines.append(name + ":")
    def text(self):
        out = []
        for ln in self.lines:
            t = ln.strip()
            if not t:
                continue
            if t.endswith(":") or t.startswith("."):
                out.append(t)
            elif t.startswith(";"):
                out.append("  " + t)
            else:
                out.append("  " + t)
        return "\n".join(out) + "\n"

def vr(a, n=1):
    return f"v{a}" if n == 1 else f"v[{a}:{a+n-1}]"
def sr(a, n=1):
    return f"s{a}" if n == 1 else f"s[{a}:{a+n-1}]"

_reg = re.compile(r"^-?(?:abs\()?\|?([vsa])(?:(\d+)|\[(\d+):(\d+)\])\)?\|?$")
def regs(tok):
    tok = tok.strip()
    m = _reg.match(tok)
    if not m:
        if tok in ("vcc", "exec"): return {(tok, 0)}
        if tok in ("m0",): return {("m0", 0)}
        return set()
    f = m.group(1)
    if m.group(2) is not None:
        return {(f, int(m.group(2)))}
    return {(f, i) for i in range(int(m.group(3)), int(m.group(4)) + 1)}

TRANS = ("v_exp_f32", "v_log_f32", "v_rcp_f32", "v_rsq_f32", "v_sqrt_f32")
def parse(line):
    line = line.split(";")[0].strip()
    if not line or line.endswith(":") or line.startswith("."):
        return None
    parts = line.split(None, 1)
    op = parts[0]
    ops = []
    if len(parts) > 1:
        cur = ""; depth = 0
        for ch in parts[1]:
            if ch == "[": depth += 1
            if ch == "]": depth -= 1
            if ch == "," and depth == 0:
                ops.append(cur.strip()); cur = ""
            else:
                cur += ch
        ops.append(cur.strip())
        last = ops[-1].split()
        if last:
            ops[-1] = last[0]
    return op, ops

def classify(op, ops):
    d = set(); u = set(); kind = "other"
    R = [regs(o) for o in ops]
    if op.startswith("v_smfmac"):
        kind = "mfma"; d = R[0]; u = R[0] | R[1] | R[2] | R[3]
        return dict(kind=kind, defs=d, uses=u, ab=R[1] | R[2] | R[3], c=R[0], passes=8 if "32x32" in op else 4, sm=True)
    if op.startswith("v_mfma"):
        kind = "mfma"; d = R[0]; u = R[1] | R[2] | R[3]
        return dict(kind=kind, defs=d, uses=u, ab=R[1] | R[2], c=R[3], passes=8 if "32x32" in op else 4, sm=False)
    if op.startswith("v_cmp"):
        return dict(kind="valu", defs=R[0], uses=set().union(*R[1:]), sdef=True)
    if op.startswith("v_readfirstlane") or op.startswith("v_readlane"):
        return dict(kind="valu", defs=R[0], uses=set().union(*R[1:]), sdef=True, rl=True)
    if op.startswith("v_permlane"):
        return dict(kind="valu", defs=R[0] | R[1], uses=R[0] | R[1], perm=True)
    if op.startswith("v_"):
        d = R[0]; u = set().union(*R[1:]) if len(R) > 1 else set()
        if op.startswith("v_fmac") or op.startswith("v_pk_fmac"): u |= d
        if op.startswith("v_cndmask") and len(ops) == 3: u |= {("vcc", 0)}
        if "_co_" in op:
            d = R[0] | R[1]; u = set().union(*R[2:])
        return dict(kind="valu", defs=d, uses=u, trans=op.replace("_e32", "").replace("_e64", "") in TRANS, dpp="dpp" in op)
    if op.startswith("ds_read"):
        return dict(kind="ds", defs=R[0], uses=set().union(*R[1:]))
    if op.startswith("ds_"):
        return dict(kind="ds", defs=set(), uses=set().union(*R))
    if op.startswith("buffer_load") or op.startswith("global_load"):
        lds = False
        return dict(kind="vmem", defs=R[0], uses=set().union(*R[1:]))
    if op.startswith("buffer_store") or op.startswith("global_store") or op.startswith("buffer_atomic") or op.startswith("global_atomic"):
        wide = "x4" in op or "x3" in op
        data = R[0] if op.startswith("buffer") else R[1]
        return dict(kind="vmem", defs=set(), uses=set().union(*R), store_data=data if wide else set())
    if op.startswith("s_nop"):
        return dict(kind="nop", defs=set(), uses=set(), n=int(ops[0], 0) + 1)
    if op.startswith("s_"):
        if op.startswith("s_cmp") or op.startswith("s_cbranch") or op.startswith("s_branch") or op.startswith("s_waitcnt") or op.startswith("s_barrier") or op.startswith("s_setprio") or op.startswith("s_endpgm") or op.startswith("s_sleep"):
            return dict(kind="salu", defs=set(), uses=set().union(*R) if R else set())
        return dict(kind="salu", defs=R[0] if R else set(), uses=set().union(*R[1:]) if len(R) > 1 else set())
    return dict(kind=kind, defs=d, uses=u)

def check_linear(lines, name=""):
    ins = []
    for ln in lines:
        p = parse(ln)
        if p is None: continue
        op, ops = p
        c = classify(op, ops)
        if op.startswith("buffer_load") and " lds" in ln.split(";")[0]:
            c["uses"] = set().union(*[regs(o) for o in ops]) | {("m0", 0)}
            c["defs"] = set(); c["ldsdma"] = True
        c["text"] = ln.strip()
        ins.append(c)
    errs = []
    for i, a in enumerate(ins):
        dist = 0
        for j in range(i + 1, min(i + 40, len(ins))):
            b = ins[j]
            need = 0
            if a["kind"] == "valu":
                vd = {r for r in a["defs"] if r[0] in "va"}
                sd = {r for r in a["defs"] if r[0] not in "va"}
                if b["kind"] == "mfma" and vd & b["uses"]: need = max(need, 2)
                if a.get("trans") and b["kind"] == "valu" and not b.get("trans") and vd & b["uses"]: need = max(need, 1)
                if b.get("perm") and vd & b["uses"]: need = max(need, 2)
                if b.get("rl") and vd & b["uses"]: need = max(need, 1)
                if b.get("dpp") and vd & b["uses"]: need = max(need, 2)
                if sd and b["kind"] == "vmem" and sd & b["uses"]: need = max(need, 5)
                if sd and b["kind"] == "valu" and sd & b["uses"]: need = max(need, 2)
                if ("exec", 0) in sd and b["kind"] == "mfma": need = max(need, 4)
            if a["kind"] == "mfma":
                P = a["passes"]
                full = {8: 12, 4: 8}[P]; part = {8: 10, 4: 6}[P]; war = {8: 7, 4: 3}[P]
                if b["kind"] == "mfma":
                    if a["defs"] & b["ab"]: need = max(need, full)
                    if a["defs"] & b["c"] and a["defs"] != b["c"]: need = max(need, part)
                    if a["defs"] & b["defs"] and not (a["defs"] & b["c"]) and a["defs"] != b["defs"]: need = max(need, part)
                elif b["kind"] == "valu":
                    if a["defs"] & (b["uses"] | b["defs"]): need = max(need, full)
                    if (not a.get("sm")) and a["c"] & b["defs"]: need = max(need, war)
                elif b["kind"] in ("vmem", "ds"):
                    if a["defs"] & (b["uses"] | b["defs"]): need = max(need, full)
            if a["kind"] == "salu" and ("m0", 0) in a["defs"] and b.get("ldsdma"): need = max(need, 1)
            if a.get("store_data") and b["kind"] == "valu" and a["store_data"] & b["defs"]: need = max(need, 2)
            if a.get("store_data") and b["kind"] != "valu" and a["store_data"] & b["defs"]: need = max(need, 1)
            if need > dist:
                errs.append(f"{name}: need {need} have {dist}: [{a['text']}] -> [{b['text']}]")
            dist += b.get("n", 1)
            if dist >= 12: break
    return errs
```

```python
import sys, math
from asmlib import Asm, vr, sr, check_linear

NAME = "concat_heads__mha_block__softmax_full_mha__prompt"
WS_K = 0
WS_V = 4 << 20
WS_Q = 8 << 20
WS_O = 12 << 20
WS_SIZE = 17 << 20
QSCALE = 0.25 * math.log2(math.e)

def f32hex(x):
    import struct
    return "0x%08x" % struct.unpack("<I", struct.pack("<f", x))[0]

sW = 3
sP, sHP, sRB, sHD, sG = 24, 25, 26, 27, 28
SRD_X, SRD_W, SRD_WS, SRD_O = 8, 12, 16, 20

def prologue(a, lab, need):
    a(f"s_cmp_ge_u32 s2, 256")
    a(f"s_cbranch_scc1 {lab}_end")
    a("s_and_b32 s29, s2, 7")
    a("s_lshr_b32 s30, s2, 3")
    a(f"s_lshr_b32 s{sP}, s29, 2")
    a(f"s_mul_i32 s31, s{sP}, 24")
    a("s_load_dwordx4 s[4:7], s[0:1], s31")
    a("s_add_u32 s31, s31, 16")
    a("s_load_dwordx2 s[32:33], s[0:1], s31")
    a("s_load_dwordx2 s[34:35], s[0:1], 48")
    a("s_load_dwordx2 s[36:37], s[0:1], 64")
    a("s_load_dwordx2 s[38:39], s[0:1], 56")
    a("v_lshrrev_b32 v1, 6, v0")
    a("s_and_b32 s29, s29, 3")
    a("s_lshl_b32 s29, s29, 2")
    a(f"v_readfirstlane_b32 s{sW}, v1")
    a(f"s_and_b32 s{sRB}, s30, 7")
    a("s_lshr_b32 s30, s30, 3")
    a(f"s_add_u32 s{sHP}, s29, s30")
    a("v_and_b32 v0, 63, v0")
    a(f"s_lshr_b32 s{sHD}, s{sW}, 2")
    a(f"s_and_b32 s{sG}, s{sW}, 3")
    a("s_waitcnt lgkmcnt(0)")
    if 'x' in need:
        a(f"s_mov_b32 s{SRD_X}, s4\ns_mov_b32 s{SRD_X+1}, s5\ns_mov_b32 s{SRD_X+2}, 0x200000\ns_mov_b32 s{SRD_X+3}, 0x20000")
    if 'w' in need:
        a(f"s_mov_b32 s{SRD_W}, s6\ns_mov_b32 s{SRD_W+1}, s7\ns_mov_b32 s{SRD_W+2}, 0x180000\ns_mov_b32 s{SRD_W+3}, 0x20000")
    if 'ws' in need:
        a(f"s_mov_b32 s{SRD_WS}, s36\ns_mov_b32 s{SRD_WS+1}, s37\ns_mov_b32 s{SRD_WS+2}, {WS_SIZE}\ns_mov_b32 s{SRD_WS+3}, 0x20000")
    if 'wo' in need:
        a(f"s_mov_b32 s{SRD_W}, s32\ns_mov_b32 s{SRD_W+1}, s33\ns_mov_b32 s{SRD_W+2}, 0x80000\ns_mov_b32 s{SRD_W+3}, 0x20000")
    if 'out' in need:
        a(f"s_mov_b32 s{SRD_O}, s34\ns_mov_b32 s{SRD_O+1}, s35\ns_mov_b32 s{SRD_O+2}, 0x400000\ns_mov_b32 s{SRD_O+3}, 0x20000")

def stamp(a, idx, opt):
    if opt.get("stamp"):
        a(f"s_memtime s[{60+2*idx}:{61+2*idx}]")

def dump_stamps(a, n, opt, base):
    if not opt.get("stamp"): return
    a("s_memrealtime s[90:91]")
    a("s_waitcnt lgkmcnt(0)")
    a(f"s_lshl_b32 s92, s2, 3\ns_add_u32 s92, s92, s{sW}\ns_lshl_b32 s92, s92, 6\ns_add_u32 s92, s92, {base}")
    a("v_mov_b32 v2, s92")
    for i in range(1, n):
        a(f"s_sub_u32 s93, s{60+2*i}, s60")
        a("v_mov_b32 v3, s93")
        a(f"buffer_store_dword v3, v2, s[{SRD_WS}:{SRD_WS+3}], 0 offen offset:{4*i}")
    a("v_mov_b32 v3, s88")
    a(f"buffer_store_dword v3, v2, s[{SRD_WS}:{SRD_WS+3}], 0 offen offset:56")
    a("v_mov_b32 v3, s90")
    a(f"buffer_store_dword v3, v2, s[{SRD_WS}:{SRD_WS+3}], 0 offen offset:60")

P1 = dict(
    vXo=4,
    vWo=8,
    vXa=10,
    vWq=26, vWv=27,
    F=28,
    accA=64, accB=80, accV=96,
    QA=112, QB=116, KA=120, KB=124, VV=128,
    vT=136,
)
LDS_W = 98304

def phase1(a, opt):
    R = P1
    t = R['vT']
    a(f"s_lshl_b32 s29, s{sRB}, 8\ns_lshl_b32 s30, s{sW}, 5\ns_add_u32 s29, s29, s30\ns_lshl_b32 s29, s29, 10")
    a(f"v_lshrrev_b32 {vr(t)}, 4, v0\nv_and_b32 {vr(t+1)}, 7, v0\nv_xor_b32 {vr(t)}, {vr(t)}, {vr(t+1)}\nv_lshlrev_b32 {vr(t)}, 4, {vr(t)}")
    a(f"v_lshrrev_b32 {vr(t+1)}, 3, v0\nv_lshlrev_b32 {vr(t+1)}, 10, {vr(t+1)}\nv_add_u32 {vr(t+1)}, s29, {vr(t+1)}")
    a(f"v_xor_b32 {vr(t+2)}, 64, {vr(t)}")
    a(f"v_add_u32 {vr(R['vXo'])}, {vr(t+1)}, {vr(t)}")
    a(f"v_add_u32 {vr(R['vXo']+1)}, {vr(t+1)}, {vr(t+2)}\nv_add_u32 {vr(R['vXo']+1)}, 7168, {vr(R['vXo']+1)}")
    a(f"v_add_u32 {vr(R['vXo']+2)}, 14336, {vr(R['vXo'])}")
    a(f"v_add_u32 {vr(R['vXo']+3)}, 14336, {vr(R['vXo']+1)}")
    a(f"s_mul_i32 s29, s{sW}, 96\ns_lshl_b32 s30, s{sHP}, 6")
    for i in range(2):
        d = R['vWo'] + i
        a(f"v_add_u32 {vr(t)}, s29, v0")
        if i: a(f"v_add_u32 {vr(t)}, 64, {vr(t)}")
        a(f"v_mul_u32_u24 {vr(t+1)}, 1366, {vr(t)}\nv_lshrrev_b32 {vr(t+1)}, 16, {vr(t+1)}")
        a(f"v_mul_u32_u24 {vr(t+2)}, 48, {vr(t+1)}\nv_sub_u32 {vr(t+2)}, {vr(t)}, {vr(t+2)}")
        a(f"v_bfe_u32 {vr(t+3)}, {vr(t+2)}, 1, 2\nv_lshl_add_u32 {vr(t+1)}, {vr(t+1)}, 2, {vr(t+3)}")
        a(f"v_mul_u32_u24 {vr(d)}, 3072, {vr(t+1)}")
        a(f"v_and_b32 {vr(t+3)}, 1, {vr(t+2)}\nv_lshl_add_u32 {vr(d)}, {vr(t+3)}, 4, {vr(d)}")
        a(f"v_bfe_u32 {vr(t+3)}, {vr(t+2)}, 3, 1")
        a(f"v_lshrrev_b32 {vr(t+4)}, 4, {vr(t+2)}")
        a(f"v_lshlrev_b32 {vr(t+5)}, 10, {vr(t+3)}\nv_lshl_add_u32 {vr(t+5)}, {vr(t+4)}, 5, {vr(t+5)}")
        a(f"v_lshlrev_b32 {vr(t+6)}, 5, {vr(t+3)}\nv_add_u32 {vr(t+6)}, 2048, {vr(t+6)}")
        a(f"v_cmp_eq_u32 vcc, 2, {vr(t+4)}\ns_nop 1\nv_cndmask_b32 {vr(t+5)}, {vr(t+5)}, {vr(t+6)}, vcc")
        a(f"v_add3_u32 {vr(d)}, {vr(d)}, {vr(t+5)}, s30")
        if i: a(f"v_subrev_u32 {vr(d)}, 1024, {vr(d)}")
    if opt.get("rot", 1):
        a("s_lshr_b32 s40, s2, 3\ns_lshr_b32 s41, s2, 6\ns_add_u32 s40, s40, s41\ns_and_b32 s40, s40, 7")
    else:
        a("s_mov_b32 s40, 0")
    a(f"s_lshl_b32 s42, s{sW}, 12")
    a(f"s_mul_i32 s43, s{sW}, 1536\ns_add_u32 s43, s43, {LDS_W}")
    a("s_mov_b32 s46, -1\ns_mov_b32 s47, 0")
    def dma(c):
        st = c % 3
        L = []
        L.append(f"s_add_u32 s41, s40, {c}\ns_and_b32 s41, s41, 7\ns_lshl_b32 s44, s41, 7\ns_mul_i32 s45, s41, 196608")
        L.append(f"s_add_u32 m0, s42, {st*32768}\ns_nop 0")
        for i in range(4):
            L.append(f"buffer_load_dwordx4 {vr(R['vXo']+i)}, s[{SRD_X}:{SRD_X+3}], s44 offen offset:{1024*i} lds")
        L.append(f"s_add_u32 m0, s43, {st*12288}\ns_nop 0")
        L.append(f"buffer_load_dwordx4 {vr(R['vWo'])}, s[{SRD_W}:{SRD_W+3}], s45 offen lds")
        L.append(f"s_mov_b64 exec, s[46:47]\nbuffer_load_dwordx4 {vr(R['vWo']+1)}, s[{SRD_W}:{SRD_W+3}], s45 offen offset:1024 lds\ns_mov_b64 exec, -1")
        return L
    for c in range(3):
        for x in dma(c): a(x)
    a(f"v_lshrrev_b32 {vr(t)}, 1, v0\nv_and_b32 {vr(t)}, 7, {vr(t)}\nv_lshrrev_b32 {vr(t+1)}, 5, v0\nv_xor_b32 {vr(t)}, {vr(t)}, {vr(t+1)}\nv_lshlrev_b32 {vr(t)}, 4, {vr(t)}")
    a(f"v_and_b32 {vr(t+2)}, 31, v0\nv_lshlrev_b32 {vr(t+3)}, 7, {vr(t+2)}")
    a(f"s_lshl_b32 s29, s{sG}, 1\ns_add_u32 s29, s29, s{sHD}\ns_lshl_b32 s29, s29, 12")
    a(f"v_add_u32 {vr(t+3)}, s29, {vr(t+3)}")
    for s in range(4):
        x = R['vXa']
        a(f"v_xor_b32 {vr(t+4)}, {s*32}, {vr(t)}\nv_add_u32 {vr(x+s)}, {vr(t+3)}, {vr(t+4)}")
        a(f"v_xor_b32 {vr(x+4+s)}, 4096, {vr(x+s)}")
        a(f"v_add_u32 {vr(x+8+s)}, 0x10000, {vr(x+s)}\nv_add_u32 {vr(x+12+s)}, 0x10000, {vr(x+4+s)}")
    a(f"v_mul_u32_u24 {vr(t+1)}, 1536, {vr(t+1)}\nv_lshl_add_u32 {vr(t+1)}, {vr(t+2)}, 3, {vr(t+1)}")
    a(f"v_add_u32 {vr(R['vWv'])}, {LDS_W+512}, {vr(t+1)}")
    a(f"s_lshl_b32 s29, s{sHD}, 8\ns_add_u32 s29, s29, {LDS_W}\nv_add_u32 {vr(R['vWq'])}, s29, {vr(t+1)}")
    def reads(c, s, fs):
        st = c % 3
        F = R['F'] + 16 * fs
        xo = 8 if st == 2 else 0
        xi = 32768 if st == 1 else 0
        wi = st * 12288 + s * 3072
        return [f"ds_read_b128 {vr(F,4)}, {vr(R['vXa']+xo+s)} offset:{xi}",
                f"ds_read_b64_tr_b16 {vr(F+8,2)}, {vr(R['vWq'])} offset:{wi}",
                f"ds_read_b64_tr_b16 {vr(F+10,2)}, {vr(R['vWq'])} offset:{wi+768}",
                f"ds_read_b128 {vr(F+4,4)}, {vr(R['vXa']+xo+4+s)} offset:{xi}",
                f"ds_read_b64_tr_b16 {vr(F+12,2)}, {vr(R['vWv'])} offset:{wi}",
                f"ds_read_b64_tr_b16 {vr(F+14,2)}, {vr(R['vWv'])} offset:{wi+768}"]
    def mfmas(fs, first):
        F = R['F'] + 16 * fs
        c = lambda r: "0" if first else vr(r, 16)
        return [f"v_mfma_f32_32x32x16_bf16 {vr(R['accA'],16)}, {vr(F+8,4)}, {vr(F,4)}, {c(R['accA'])}",
                f"v_mfma_f32_32x32x16_bf16 {vr(R['accB'],16)}, {vr(F+8,4)}, {vr(F+4,4)}, {c(R['accB'])}",
                f"v_mfma_f32_32x32x16_bf16 {vr(R['accV'],16)}, {vr(F,4)}, {vr(F+12,4)}, {c(R['accV'])}"]
    stamp(a, 1, opt)
    a("s_waitcnt vmcnt(12)\ns_barrier")
    stamp(a, 2, opt)
    for x in reads(0, 0, 0): a(x)
    for c in range(8):
        for s in range(4):
            fs = s & 1
            M = mfmas(fs, c == 0 and s == 0)
            if s < 3:
                Rd = reads(c, s + 1, fs ^ 1)
                a("s_waitcnt lgkmcnt(0)")
                a(M[0]); a(Rd[0]); a(Rd[1])
                a(M[1]); a(Rd[2]); a(Rd[3])
                a(M[2]); a(Rd[4]); a(Rd[5])
            else:
                if c < 7:
                    nout = min(2, 7 - c) - 1
                    a(f"s_waitcnt vmcnt({6*nout}) lgkmcnt(0)\ns_barrier")
                    Rd = reads(c + 1, 0, fs ^ 1)
                    a(M[0]); a(Rd[0]); a(Rd[1])
                    a(M[1]); a(Rd[2]); a(Rd[3])
                    a(M[2]); a(Rd[4]); a(Rd[5])
                    if c + 3 < 8:
                        for x in dma(c + 3): a(x)
                else:
                    a("s_waitcnt lgkmcnt(0)\ns_barrier")
                    for m in M: a(m)
    stamp(a, 3, opt)
    a(f"s_mov_b32 s29, {f32hex(QSCALE)}")
    a(f"v_and_b32 {vr(t)}, 0x33, v0\nv_and_b32 {vr(t+1)}, 4, v0\nv_lshl_or_b32 {vr(t)}, {vr(t+1)}, 1, {vr(t)}\nv_and_b32 {vr(t+1)}, 8, v0\nv_lshrrev_b32 {vr(t+1)}, 1, {vr(t+1)}\nv_or_b32 {vr(t)}, {vr(t)}, {vr(t+1)}")
    a(f"v_lshlrev_b32 {vr(t)}, 4, {vr(t)}")
    a(f"v_lshlrev_b32 {vr(t+1)}, 4, v0")
    a(f"s_lshl_b32 s30, s{sP}, 4\ns_add_u32 s30, s30, s{sHP}\ns_lshl_b32 s31, s30, 17")
    a(f"s_lshl_b32 s48, s{sHD}, 16\ns_add_u32 s48, s48, s31")
    a(f"s_lshl_b32 s49, s{sRB}, 3\ns_lshl_b32 s50, s{sG}, 1\ns_add_u32 s49, s49, s50\ns_add_u32 s49, s49, s{sHD}")
    a(f"s_xor_b32 s50, s49, 1")
    a(f"s_lshl_b32 s51, s49, 10\ns_add_u32 s51, s51, s48\ns_lshl_b32 s52, s50, 10\ns_add_u32 s52, s52, s48")
    a(f"s_lshl_b32 s53, s49, 11\ns_add_u32 s53, s53, s31\ns_add_u32 s53, s53, {WS_V}")
    a(f"s_add_u32 s54, s51, {WS_Q}\ns_add_u32 s55, s52, {WS_Q}")
    for acc, K, so in ((R['accA'], R['KA'], 51), (R['accB'], R['KB'], 52)):
        for i in range(4):
            a(f"v_cvt_pk_bf16_f32 {vr(K+i)}, {vr(acc+8+2*i)}, {vr(acc+9+2*i)}")
        a(f"buffer_store_dwordx4 {vr(K,4)}, {vr(t)}, s[{SRD_WS}:{SRD_WS+3}], s{so} offen")
    for m in range(2):
        for i in range(4):
            a(f"v_cvt_pk_bf16_f32 {vr(R['VV']+4*m+i)}, {vr(R['accV']+8*m+2*i)}, {vr(R['accV']+8*m+2*i+1)}")
        a(f"buffer_store_dwordx4 {vr(R['VV']+4*m,4)}, {vr(t+1)}, s[{SRD_WS}:{SRD_WS+3}], s53 offen offset:{1024*m}")
    for acc, Q, so in ((R['accA'], R['QA'], 54), (R['accB'], R['QB'], 55)):
        for i in range(8):
            a(f"v_mul_f32 {vr(acc+i)}, s29, {vr(acc+i)}")
        for i in range(4):
            a(f"v_cvt_pk_bf16_f32 {vr(Q+i)}, {vr(acc+2*i)}, {vr(acc+2*i+1)}")
        a(f"buffer_store_dwordx4 {vr(Q,4)}, {vr(t+1)}, s[{SRD_WS}:{SRD_WS+3}], s{so} offen")
    stamp(a, 4, opt)

P2 = dict(QA=112, QB=116, CA=144, CB=160, SX=176, SY=192, OA=208, OB=224,
          KR=4, VR=20, IDX=36, vK=37, vV=38, vVb=39, vT=40)

def smf(o, v, b, R=P2): return f"v_smfmac_f32_32x32x32_bf16 {vr(o,16)}, {vr(v,4)}, {vr(b,8)}, {vr(R['IDX'])}"
def qk(d, k, q, c): return f"v_mfma_f32_32x32x16_bf16 {vr(d,16)}, {vr(k,4)}, {vr(q,4)}, {c}"

def step(X, Y, Oc, Op, Kn, Qn, Cn, Va, Vprev, extra, pos):
    L = []
    for i in range(16):
        for e in extra.get((i, 0), []): L.append(e)
        if i == pos[0]: L.append(smf(Op, Vprev, Y + 8))
        if i == pos[1]: L.append(qk(Y, Kn, Qn, vr(Cn, 16)))
        if i == pos[2]: L.append(smf(Oc, Va, X))
        for e in extra.get((i, 1), []): L.append(e)
        L.append(f"v_exp_f32 {vr(X+i)}, {vr(X+i)}")
    return L

def body(opt, kwait=(2, 2, 2, 2), tail=None):
    R = P2
    pos = opt.get("pos", (2, 5, 10))
    L = []
    for j in range(4):
        K0 = R['KR'] + 4 * j; K1 = R['KR'] + 4 * ((j + 1) & 3)
        V0 = R['VR'] + 8 * (j & 1); V1 = R['VR'] + 8 * ((j + 1) & 1)
        exA = {}; exB = {}
        rd = []
        if j == 3: rd.append(f"v_add_u32 {vr(R['vVb'])}, s53, {vr(R['vV'])}")
        off = ((j + 1) & 3) * 2048
        rd += ["s_mov_b64 exec, s[46:47]",
               f"ds_read_b128 {vr(V1,4)}, {vr(R['vVb'])} offset:{off}",
               f"ds_read_b128 {vr(V1+4,4)}, {vr(R['vVb'])} offset:{off+1024}",
               "s_mov_b64 exec, -1"]
        exA[(pos[0] + 1, 0)] = rd
        exA[(pos[2], 0)] = ["s_waitcnt lgkmcnt(2)"]
        if kwait[j] is not None:
            exB[(pos[1], 0)] = [f"s_waitcnt vmcnt({kwait[j]})"]
        exB[(pos[1] + 1, 0)] = [f"buffer_load_dwordx4 {vr(K0,4)}, {vr(R['vK'])}, s[{SRD_WS}:{SRD_WS+3}], s52 offen offset:{1024*j}"]
        if j == 3 and tail: exB[(pos[2] + 1, 0)] = tail
        L += step(R['SX'], R['SY'], R['OA'], R['OB'], K0, R['QB'], R['CB'], V0, V1 + 4, exA, pos)
        L += step(R['SY'], R['SX'], R['OB'], R['OA'], K1, R['QA'], R['CA'], V0, V0 + 4, exB, pos)
    return L

def adv():
    return ["s_add_u32 s54, s54, 4096", "s_and_b32 s54, s54, 0xffff", "s_add_u32 s52, s54, s48", "s_lshl_b32 s53, s54, 1"]

def phase2(a, opt):
    R = P2
    t = R['vT']
    a(f"s_lshl_b32 s30, s{sP}, 4\ns_add_u32 s30, s30, s{sHP}\ns_lshl_b32 s31, s30, 17")
    a(f"s_lshl_b32 s48, s{sHD}, 16\ns_add_u32 s48, s48, s31")
    a(f"s_lshl_b32 s49, s{sRB}, 3\ns_lshl_b32 s50, s{sG}, 1\ns_add_u32 s49, s49, s50\ns_add_u32 s49, s49, s{sHD}")
    a(f"s_xor_b32 s50, s49, 1")
    a(f"v_lshlrev_b32 {vr(R['vK'])}, 4, v0")
    a(f"s_lshl_b32 s51, s49, 10\ns_add_u32 s51, s51, s48\ns_add_u32 s51, s51, {WS_Q}\ns_xor_b32 s55, s51, 1024")
    a(f"buffer_load_dwordx4 {vr(R['QA'],4)}, {vr(R['vK'])}, s[{SRD_WS}:{SRD_WS+3}], s51 offen")
    a(f"buffer_load_dwordx4 {vr(R['QB'],4)}, {vr(R['vK'])}, s[{SRD_WS}:{SRD_WS+3}], s55 offen")
    a(f"s_lshl_b32 s54, s{sRB}, 13\ns_add_u32 s52, s54, s48")
    for j in range(4):
        a(f"buffer_load_dwordx4 {vr(R['KR']+4*j,4)}, {vr(R['vK'])}, s[{SRD_WS}:{SRD_WS+3}], s52 offen offset:{1024*j}")
    a(f"s_add_u32 s31, s31, {WS_V}\ns_lshl_b32 s29, s{sW}, 11\ns_add_u32 s31, s31, s29")
    for c in range(8):
        a(f"s_add_u32 s30, s{sRB}, {c}\ns_and_b32 s30, s30, 7\ns_lshl_b32 s30, s30, 14\ns_add_u32 m0, s30, s29\ns_add_u32 s30, s30, s31")
        for i in range(2):
            a(f"buffer_load_dwordx4 {vr(R['vK'])}, s[{SRD_WS}:{SRD_WS+3}], s30 offen offset:{1024*i} lds")
    a(f"v_mov_b32 {vr(R['IDX'])}, 0xdddddddd")
    a(f"v_and_b32 {vr(t)}, 16, v0\nv_cmp_eq_u32 vcc, 16, {vr(t)}\nv_mov_b32 {vr(t+1)}, 0x3f803f80\nv_mov_b32 {vr(t+2)}, 0")
    a(f"v_cndmask_b32 {vr(R['VR'])}, {vr(t+2)}, {vr(t+1)}, vcc")
    for i in range(1, 16): a(f"v_mov_b32 {vr(R['VR']+i)}, {vr(R['VR'])}")
    for i in range(16): a(f"v_mov_b32 {vr(R['OA']+i)}, 0")
    for i in range(16): a(f"v_mov_b32 {vr(R['OB']+i)}, 0")
    a(f"v_lshrrev_b32 {vr(t)}, 5, v0\nv_lshlrev_b32 {vr(t)}, 9, {vr(t)}\nv_and_b32 {vr(t+1)}, 15, v0\nv_lshl_add_u32 {vr(t)}, {vr(t+1)}, 4, {vr(t)}")
    a(f"s_lshl_b32 s29, s{sHD}, 8\nv_add_u32 {vr(R['vV'])}, s29, {vr(t)}")
    a(f"s_lshl_b32 s53, s54, 1\nv_add_u32 {vr(R['vVb'])}, s53, {vr(R['vV'])}")
    a("s_mov_b32 s46, 0xffff\ns_mov_b32 s47, 0xffff")
    for x in adv(): a(x)
    stamp(a, 1, opt)
    a("s_waitcnt vmcnt(12)\ns_barrier")
    stamp(a, 2, opt)
    a("s_mov_b64 exec, s[46:47]")
    a(f"ds_read_b128 {vr(R['VR'],4)}, {vr(R['vVb'])}\nds_read_b128 {vr(R['VR']+4,4)}, {vr(R['vVb'])} offset:1024")
    a("s_mov_b64 exec, -1")
    a(qk(R['SX'], R['KR'], R['QA'], "0"))
    a(qk(R['SY'], R['KR'], R['QB'], "0"))
    a("s_nop 7\ns_nop 2")
    for S, tt in ((R['SX'], t), (R['SY'], t + 2)):
        a(f"v_max3_f32 {vr(tt)}, {vr(S)}, {vr(S+1)}, {vr(S+2)}")
        for i in range(3, 15, 2):
            a(f"v_max3_f32 {vr(tt)}, {vr(tt)}, {vr(S+i)}, {vr(S+i+1)}")
        a(f"v_max_f32 {vr(tt)}, {vr(tt)}, {vr(S+15)}")
        a(f"v_mov_b32 {vr(tt+1)}, {vr(tt)}")
    a("s_nop 1")
    a(f"v_permlane32_swap_b32 {vr(t)}, {vr(t+1)}\nv_permlane32_swap_b32 {vr(t+2)}, {vr(t+3)}")
    for C, tt in ((R['CA'], t), (R['CB'], t + 2)):
        a(f"v_min_f32 {vr(C)}, -{vr(tt)}, -{vr(tt+1)}")
        a(f"v_min_f32 {vr(C+1)}, -{vr(tt)}, -{vr(tt+1)}")
        for i in range(2, 16, 2):
            a(f"v_pk_mov_b32 {vr(C+i,2)}, {vr(C,2)}, {vr(C,2)} op_sel:[0,1]")
    a("s_nop 1")
    a(qk(R['SX'], R['KR'], R['QA'], vr(R['CA'], 16)))
    for i in range(8, 16): a(f"v_mov_b32 {vr(R['SY']+i)}, 0")
    a("s_nop 3")
    if opt.get("prio"):
        a(f"s_cmp_eq_u32 s{sHD}, 0\ns_cbranch_scc1 att_noprio\ns_setprio 1\natt_noprio:")
    first = body(opt, kwait=(None, None, None, 2), tail=adv())
    for x in first: a(x)
    a("s_barrier")
    a("s_mov_b32 s56, 15")
    a(".p2align 6")
    a.label("att_loop")
    tail = adv() + ["s_sub_u32 s56, s56, 1"]
    if opt.get("prio"):
        tail += [f"s_cmp_lg_u32 s56, {opt['prio']}", "s_cbranch_scc1 att_keepprio", "s_setprio 0", "att_keepprio:"]
    tail += ["s_cmp_lg_u32 s56, 0"]
    B = body(opt, tail=tail)
    for x in B: a(x)
    a("s_cbranch_scc1 att_loop")
    stamp(a, 3, opt)
    a("s_nop 1")
    a(smf(R['OB'], R['VR'] + 8 + 4, R['SY'] + 8))
    errs = check_linear(first + B + B + ["s_nop 1", smf(R['OB'], R['VR'] + 12, R['SY'] + 8)], "att")
    for e in errs: print("HAZARD", e, file=sys.stderr)
    a(f"s_lshl_b32 s30, s{sP}, 6\ns_add_u32 s31, s30, s49\ns_add_u32 s30, s30, s50")
    a(f"s_lshl_b32 s29, s{sHP}, 1\ns_add_u32 s29, s29, s{sHD}\ns_lshl_b32 s29, s29, 10\ns_add_u32 s29, s29, {WS_O}")
    a(f"s_lshl_b32 s31, s31, 15\ns_add_u32 s31, s31, s29\ns_lshl_b32 s30, s30, 15\ns_add_u32 s30, s30, s29")
    a("s_nop 1")
    for O, tt, so in ((R['OA'], t, 31), (R['OB'], t + 8, 30)):
        a(f"v_rcp_f32 {vr(tt+4)}, {vr(O+8)}")
        a("s_nop 0")
        for i in range(8): a(f"v_mul_f32 {vr(O+i)}, {vr(O+i)}, {vr(tt+4)}")
        for i in range(4): a(f"v_cvt_pk_bf16_f32 {vr(tt+i)}, {vr(O+2*i)}, {vr(O+2*i+1)}")
        a(f"buffer_store_dwordx4 {vr(tt,4)}, {vr(R['vK'])}, s[{SRD_WS}:{SRD_WS+3}], s{so} offen")
    stamp(a, 4, opt)

def phase3(a, opt):
    vOo, vWo, vOa, vWa, F, acc, t = 4, 5, 9, 12, 16, 48, 64
    a(f"s_lshr_b32 s29, s{sHP}, 2\ns_lshl_b32 s29, s29, 1\ns_lshl_b32 s30, s{sRB}, 3\ns_add_u32 s49, s29, s30")
    a(f"s_and_b32 s50, s{sHP}, 3")
    a(f"s_lshl_b32 s30, s{sP}, 6\ns_add_u32 s30, s30, s49\ns_add_u32 s30, s30, s{sHD}\ns_lshl_b32 s30, s30, 15")
    a(f"s_lshl_b32 s31, s{sG}, 11\ns_add_u32 s30, s30, s31\ns_add_u32 s51, s30, {WS_O}")
    a(f"v_lshlrev_b32 {vr(vOo)}, 4, v0")
    a(f"v_bfe_u32 {vr(t)}, v0, 1, 2\nv_lshlrev_b32 {vr(t)}, 10, {vr(t)}")
    a(f"v_lshrrev_b32 {vr(t+1)}, 3, v0\nv_lshl_add_u32 {vr(t)}, {vr(t+1)}, 5, {vr(t)}")
    a(f"v_and_b32 {vr(t+1)}, 1, v0\nv_lshl_add_u32 {vr(t)}, {vr(t+1)}, 4, {vr(t)}")
    a(f"s_lshl_b32 s30, s50, 8\ns_lshl_b32 s31, s{sW}, 14\ns_add_u32 s30, s30, s31\nv_add_u32 {vr(vWo)}, s30, {vr(t)}")
    for i in range(1, 4): a(f"v_add_u32 {vr(vWo+i)}, {3072*i}, {vr(vWo)}")
    a(f"s_lshl_b32 s42, s{sW}, 11\ns_lshl_b32 s43, s{sW}, 12\ns_add_u32 s43, s43, 16384")
    def dma(c):
        st = (c % 3) * 49152
        L = [f"s_add_u32 s44, s51, {c*8192}\ns_add_u32 m0, s42, {st}\ns_mov_b32 s45, {c*131072}"]
        for i in range(2):
            L.append(f"buffer_load_dwordx4 {vr(vOo)}, s[{SRD_WS}:{SRD_WS+3}], s44 offen offset:{1024*i} lds")
        L.append(f"s_add_u32 m0, s43, {st}\ns_nop 0")
        for i in range(4):
            L.append(f"buffer_load_dwordx4 {vr(vWo+i)}, s[{SRD_W}:{SRD_W+3}], s45 offen offset:{1024*i} lds")
        return L
    for c in range(3):
        for x in dma(c): a(x)
    a(f"s_lshl_b32 s29, s{sHD}, 13\nv_add_u32 {vr(vOa)}, s29, {vr(vOo)}")
    a(f"v_lshrrev_b32 {vr(t)}, 5, v0\nv_lshlrev_b32 {vr(t)}, 10, {vr(t)}")
    a(f"v_bfe_u32 {vr(t+1)}, v0, 2, 3\nv_lshl_add_u32 {vr(t)}, {vr(t+1)}, 5, {vr(t)}")
    a(f"v_and_b32 {vr(t+1)}, 1, v0\nv_lshl_add_u32 {vr(t)}, {vr(t+1)}, 4, {vr(t)}")
    a(f"v_bfe_u32 {vr(t+1)}, v0, 1, 1\nv_lshl_add_u32 {vr(t)}, {vr(t+1)}, 3, {vr(t)}")
    a(f"s_lshl_b32 s29, s{sG}, 8\ns_add_u32 s29, s29, 16384\nv_add_u32 {vr(vWa)}, s29, {vr(t)}")
    for k in (1, 2):
        a(f"v_add_u32 {vr(vWa+k)}, {49152*k}, {vr(vWa)}\nv_add_u32 {vr(vOa+k)}, {49152*k}, {vr(vOa)}")
    a(f"v_and_b32 {vr(t)}, 31, v0\nv_lshlrev_b32 {vr(t)}, 11, {vr(t)}\nv_lshrrev_b32 {vr(t+1)}, 5, v0\nv_lshl_add_u32 {vr(t)}, {vr(t+1)}, 4, {vr(t)}")
    a(f"s_add_u32 s29, s49, s{sHD}\ns_lshl_b32 s29, s29, 16\ns_lshl_b32 s30, s{sP}, 10\ns_add_u32 s29, s29, s30")
    a(f"s_lshl_b32 s30, s50, 8\ns_add_u32 s29, s29, s30\ns_lshl_b32 s30, s{sG}, 6\ns_add_u32 s52, s29, s30")
    def reads(n):
        c, hh = n >> 3, n & 7
        st = c % 3
        Fr = F + 8 * (n & 3)
        return [f"ds_read_b128 {vr(Fr,4)}, {vr(vOa+st)} offset:{hh*1024}",
                f"ds_read_b64_tr_b16 {vr(Fr+4,2)}, {vr(vWa+st)} offset:{hh*4096}",
                f"ds_read_b64_tr_b16 {vr(Fr+6,2)}, {vr(vWa+st)} offset:{hh*4096 + 2048}"]
    stamp(a, 1, opt)
    a("s_waitcnt vmcnt(12)\ns_barrier")
    stamp(a, 2, opt)
    for n in range(3):
        for x in reads(n): a(x)
    for n in range(32):
        Fr = F + 8 * (n & 3)
        if n + 3 < 32:
            if (n + 3) & 7 == 0:
                c1 = (n + 3) >> 3
                a(f"s_waitcnt vmcnt({6 if c1 < 3 else 0})\ns_barrier")
            for x in reads(n + 3): a(x)
            a("s_waitcnt lgkmcnt(9)")
        else:
            a(f"s_waitcnt lgkmcnt({3*(31-n)})")
        if n == 7:
            a("s_barrier")
            for x in dma(3): a(x)
        a(f"v_mfma_f32_32x32x16_bf16 {vr(acc,16)}, {vr(Fr+4,4)}, {vr(Fr,4)}, {'0' if n == 0 else vr(acc,16)}")
    stamp(a, 3, opt)
    a("s_nop 7\ns_nop 3")
    for hf in range(2):
        for i in range(4):
            a(f"v_cvt_pk_bf16_f32 {vr(F+4*hf+i)}, {vr(acc+8*hf+2*i)}, {vr(acc+8*hf+2*i+1)}")
        a(f"buffer_store_dwordx4 {vr(F+4*hf,4)}, {vr(t)}, s[{SRD_O}:{SRD_O+3}], s52 offen offset:{32*hf}")
    stamp(a, 4, opt)

def kernel(a, name, need, fn, opt, nstamp, sbase):
    a(f".globl {name}\n.p2align 8\n.type {name},@function")
    a.label(name)
    if opt.get("stamp"):
        a("s_memrealtime s[88:89]")
        stamp(a, 0, opt)
    prologue(a, name, need)
    n0 = len(a.lines)
    fn(a, opt)
    errs = check_linear(a.lines[n0:], name)
    for e in errs: print("HAZARD", e, file=sys.stderr)
    dump_stamps(a, nstamp, opt, sbase)
    a.label(name + "_end")
    a("s_endpgm")

def kd(name, vgpr):
    return f""".amdhsa_kernel {name}
  .amdhsa_next_free_vgpr {vgpr}
  .amdhsa_next_free_sgpr 102
  .amdhsa_accum_offset {vgpr}
  .amdhsa_group_segment_fixed_size 0
  .amdhsa_kernarg_size 72
  .amdhsa_user_sgpr_count 2
  .amdhsa_user_sgpr_kernarg_segment_ptr 1
  .amdhsa_system_sgpr_workgroup_id_x 1
  .amdhsa_float_denorm_mode_32 3
.end_amdhsa_kernel
"""

def build(opt):
    ref = open("cdna_kernels/" + NAME + ".s.ref").read().split("\n")
    hdr = [l for l in ref if l.startswith(";") and "@launch" not in l]
    out = "\n".join(hdr) + "\n"
    out += "; @launch kernel=qkv_kernel grid=(256,1,1) block=(512,1,1) lds=135168\n"
    out += "; @launch kernel=att_kernel grid=(256,1,1) block=(512,1,1) lds=131072\n"
    out += "; @launch kernel=prj_kernel grid=(256,1,1) block=(512,1,1) lds=147456\n"
    out += '.amdgcn_target "amdgcn-amd-amdhsa--gfx950"\n.text\n'
    a = Asm()
    kernel(a, "qkv_kernel", {'x', 'w', 'ws'}, phase1, opt, 5, (16 << 20))
    kernel(a, "att_kernel", {'ws'}, phase2, opt, 5, (16 << 20) + 0x20000)
    kernel(a, "prj_kernel", {'wo', 'ws', 'out'}, phase3, opt, 5, (16 << 20) + 0x40000)
    out += a.text()
    out += '.section .rodata,"a"\n.p2align 6\n'
    out += kd("qkv_kernel", 256) + ".p2align 6\n" + kd("att_kernel", 256) + ".p2align 6\n" + kd("prj_kernel", 128)
    return out

if __name__ == "__main__":
    import json
    opt = json.loads(sys.argv[2]) if len(sys.argv) > 2 else {}
    open(sys.argv[1], "w").write(build(opt))
```

```python
import sys, math, struct
from asmlib import Asm, vr, sr, check_linear

NAME = "concat_heads__mha_block__softmax_full_mha__prompt"
WS_K = 0
WS_V = 4 << 20
WS_O = 8 << 20
WS_F = 12 << 20
WS_S = 13 << 20
WS_SIZE = 14 << 20
QSCALE = 0.25 * math.log2(math.e)
LDS_W = 98304
LDS_K = 131072
LDS_C = 147456

def f32hex(x): return "0x%08x" % struct.unpack("<I", struct.pack("<f", x))[0]

sW = 3
sP, sHP, sRB, sHD, sG = 24, 25, 26, 27, 28
SRD_X, SRD_W, SRD_WS, SRD_O = 8, 12, 16, 20
WS = f"s[{SRD_WS}:{SRD_WS+3}]"
sKB, sT0, sFL, sNON, sKO, sVO, sTO, sCNT, sVB = 48, 49, 50, 51, 52, 53, 54, 56, 57

def srd(a, d, lo, size):
    a(f"s_mov_b32 s{d}, s{lo}\ns_mov_b32 s{d+1}, s{lo+1}\ns_mov_b32 s{d+2}, {size}\ns_mov_b32 s{d+3}, 0x20000")

def prologue(a, lab, need):
    a(f"s_cmp_ge_u32 s2, 256\ns_cbranch_scc1 {lab}_end")
    a("s_and_b32 s29, s2, 7\ns_lshr_b32 s30, s2, 3")
    a(f"s_lshr_b32 s{sP}, s29, 2\ns_mul_i32 s31, s{sP}, 24")
    if 'x' in need: a("s_load_dwordx4 s[4:7], s[0:1], s31")
    a("s_load_dwordx2 s[36:37], s[0:1], 64")
    a("s_add_u32 s31, s31, 16")
    if 'wo' in need: a("s_load_dwordx2 s[32:33], s[0:1], s31\ns_load_dwordx2 s[34:35], s[0:1], 48")
    a("v_lshrrev_b32 v1, 6, v0\ns_and_b32 s29, s29, 3\ns_lshl_b32 s29, s29, 2")
    a(f"v_readfirstlane_b32 s{sW}, v1")
    a(f"s_and_b32 s{sRB}, s30, 7\ns_lshr_b32 s30, s30, 3\ns_add_u32 s{sHP}, s29, s30")
    a("v_and_b32 v0, 63, v0")
    a(f"s_lshr_b32 s{sHD}, s{sW}, 2\ns_and_b32 s{sG}, s{sW}, 3")

def stamp(a, idx, opt):
    if opt.get("stamp"):
        a(f"s_memtime s[{60+2*idx}:{61+2*idx}]")
        rt = opt.get("rt", (2, 3))
        if idx in rt: a(f"s_memrealtime s[{94+2*rt.index(idx)}:{95+2*rt.index(idx)}]")

def dump_stamps(a, n, opt, base):
    if not opt.get("stamp"): return
    a("s_memrealtime s[90:91]\ns_waitcnt lgkmcnt(0)")
    a(f"s_lshl_b32 s92, s2, 3\ns_add_u32 s92, s92, s{sW}\ns_lshl_b32 s92, s92, 6\ns_add_u32 s92, s92, {base}")
    a("v_mov_b32 v2, s92")
    for i in range(1, n):
        a(f"s_sub_u32 s93, s{60+2*i}, s60\nv_mov_b32 v3, s93\nbuffer_store_dword v3, v2, {WS}, 0 offen offset:{4*i}")
    a(f"s_sub_u32 s93, s96, s94\nv_mov_b32 v3, s93\nbuffer_store_dword v3, v2, {WS}, 0 offen offset:52")
    a(f"v_mov_b32 v3, s88\nbuffer_store_dword v3, v2, {WS}, 0 offen offset:56")
    a(f"v_mov_b32 v3, s90\nbuffer_store_dword v3, v2, {WS}, 0 offen offset:60")

vXo, vWo, vXa, vWa, vTch = 4, 8, 10, 14, 15
F1 = 20
aQ, aK, aV = 76, 92, 108
QA, QB = 124, 128
vT = 42

def early_constants(a, opt):
    t = 196
    a(f"v_and_b32 {vr(t)}, 0x23, v0\nv_and_b32 {vr(t+1)}, 12, v0\nv_lshl_or_b32 {vr(t)}, {vr(t+1)}, 1, {vr(t)}")
    a(f"v_and_b32 {vr(t+1)}, 16, v0\nv_lshrrev_b32 {vr(t+1)}, 2, {vr(t+1)}\nv_or_b32 {vr(t)}, {vr(t)}, {vr(t+1)}\nv_lshlrev_b32 {vr(vKp)}, 4, {vr(t)}")
    a(f"v_lshrrev_b32 {vr(t+1)}, 4, v0\nv_lshlrev_b32 {vr(t+1)}, 9, {vr(t+1)}\nv_and_b32 {vr(t+2)}, 15, v0\nv_lshl_add_u32 {vr(t+1)}, {vr(t+2)}, 4, {vr(t+1)}")
    a(f"s_lshl_b32 s30, s{sHD}, 8\ns_lshl_b32 s31, s{sT0}, 11\ns_add_u32 s30, s30, s31\nv_add_u32 {vr(vVa)}, s30, {vr(t+1)}")
    a(f"s_lshl_b32 s30, s{sT0}, 10\ns_add_u32 s55, s30, s{sKB}")
    a(f"s_lshl_b32 s30, s{sHD}, 13\ns_lshl_b32 s31, s{sG}, 11\ns_add_u32 s30, s30, s31\ns_add_u32 s30, s30, {LDS_K}\nv_add_u32 {vr(vKw)}, s30, {vr(vKp)}")
    a(f"v_mov_b32 {vr(IDX)}, 0xdddddddd\nv_lshlrev_b32 {vr(vK)}, 4, v0")
    a(f"v_and_b32 {vr(t)}, 27, v0\nv_cmp_eq_u32 vcc, 16, {vr(t)}\nv_mov_b32 {vr(t+1)}, 0x3f803f80\nv_mov_b32 {vr(t+2)}, 0")
    a(f"v_cndmask_b32 {vr(VR)}, {vr(t+2)}, {vr(t+1)}, vcc\nv_cndmask_b32 {vr(VR+1)}, {vr(t+2)}, {vr(t+1)}, vcc")
    for i in range(2, 16, 2): a(f"v_pk_mov_b32 {vr(VR+i,2)}, {vr(VR,2)}, {vr(VR,2)} op_sel:[0,1]")
    a(f"v_mov_b32 {vr(OA)}, 0\nv_mov_b32 {vr(OA+1)}, 0")
    for i in range(2, 32, 2): a(f"v_pk_mov_b32 {vr(OA+i,2)}, {vr(OA,2)}, {vr(OA,2)} op_sel:[0,1]")
    for i in range(8, 16, 2): a(f"v_pk_mov_b32 {vr(SY+i,2)}, {vr(OA,2)}, {vr(OA,2)} op_sel:[0,1]")
    a(f"v_lshrrev_b32 {vr(t)}, 5, v0\nv_lshlrev_b32 {vr(t)}, 9, {vr(t)}\nv_and_b32 {vr(t+1)}, 15, v0\nv_lshl_add_u32 {vr(t)}, {vr(t+1)}, 4, {vr(t)}")
    a(f"s_lshl_b32 s29, s{sHD}, 8\nv_add_u32 {vr(vV)}, s29, {vr(t)}")
    a(f"s_lshl_b32 s29, s{sRB}, 14\nv_add_u32 {vr(vVb)}, s29, {vr(vV)}")
    a(f"s_lshl_b32 s29, s{sHD}, 13\ns_add_u32 s29, s29, {LDS_K}\nv_add_u32 {vr(vKl)}, s29, {vr(vK)}")
    a(f"v_and_b32 {vr(vFl)}, 7, v0\nv_lshlrev_b32 {vr(vFl)}, 7, {vr(vFl)}")
    a(f"s_lshl_b32 s{sTO}, s{sRB}, 13\ns_add_u32 s{sTO}, s{sTO}, 4096")
    for x in adv(): a(x)
    a(f"v_mov_b32 {vr(vCn)}, {LDS_C}\ns_cmp_lg_u32 s{sW}, 0\ns_cbranch_scc1 early_done\nds_write_b32 {vr(vCn)}, {vr(OA)}\nearly_done:")

def m16(d, A, B, first=False):
    return f"v_mfma_f32_16x16x32_bf16 {vr(d,4)}, {vr(A,4)}, {vr(B,4)}, {'0' if first else vr(d,4)}"

def phase1(a, opt):
    t = 196
    a(f"s_lshl_b32 s29, s{sRB}, 8\ns_lshl_b32 s30, s{sW}, 5\ns_add_u32 s29, s29, s30\ns_lshl_b32 s29, s29, 10")
    a(f"v_lshrrev_b32 {vr(t)}, 4, v0\nv_and_b32 {vr(t+1)}, 7, v0\nv_xor_b32 {vr(t)}, {vr(t)}, {vr(t+1)}\nv_lshlrev_b32 {vr(t)}, 4, {vr(t)}")
    a(f"v_lshrrev_b32 {vr(t+1)}, 3, v0\nv_lshl_add_u32 {vr(t+1)}, {vr(t+1)}, 10, s29")
    a(f"v_xor_b32 {vr(t+2)}, 64, {vr(t)}")
    a(f"v_add_u32 {vr(vXo)}, {vr(t+1)}, {vr(t)}")
    a(f"v_add_u32 {vr(vXo+1)}, {vr(t+1)}, {vr(t+2)}\nv_add_u32 {vr(vXo+1)}, 7168, {vr(vXo+1)}")
    a(f"v_add_u32 {vr(vXo+2)}, 14336, {vr(vXo)}\nv_add_u32 {vr(vXo+3)}, 14336, {vr(vXo+1)}")
    rot = opt.get("rot", 1)
    if rot == 1: a("s_lshr_b32 s40, s2, 3\ns_lshr_b32 s41, s2, 6\ns_add_u32 s40, s40, s41\ns_and_b32 s40, s40, 7")
    elif rot == 2: a(f"s_mov_b32 s40, s{sRB}")
    elif rot == 3: a(f"s_and_b32 s40, s{sRB}, 1\ns_lshl_b32 s40, s40, 2")
    elif rot == 4: a(f"s_and_b32 s40, s{sRB}, 3\ns_lshl_b32 s40, s40, 1")
    elif rot == 5: a(f"s_lshl_b32 s40, s{sP}, 2\ns_add_u32 s40, s40, s{sRB}")
    else: a("s_mov_b32 s40, 0")
    a(f"s_lshl_b32 s42, s{sW}, 12")
    a(f"s_mul_i32 s43, s{sW}, 1536\ns_add_u32 s43, s43, {LDS_W}")
    a("s_mov_b32 s46, -1\ns_mov_b32 s47, 0")
    a(f"s_mul_i32 s29, s{sW}, 96\ns_lshl_b32 s30, s{sHP}, 6")
    for i in range(2):
        d = vWo + i
        a(f"v_add_u32 {vr(t)}, s29, v0")
        if i: a(f"v_add_u32 {vr(t)}, 64, {vr(t)}")
        a(f"v_mul_u32_u24 {vr(t+1)}, 1366, {vr(t)}\nv_lshrrev_b32 {vr(t+1)}, 16, {vr(t+1)}")
        a(f"v_mul_u32_u24 {vr(t+2)}, 48, {vr(t+1)}\nv_sub_u32 {vr(t+2)}, {vr(t)}, {vr(t+2)}")
        a(f"v_bfe_u32 {vr(t+3)}, {vr(t+2)}, 2, 2\nv_lshl_add_u32 {vr(t+3)}, {vr(t+1)}, 2, {vr(t+3)}")
        a(f"v_mul_u32_u24 {vr(d)}, 3072, {vr(t+3)}")
        a(f"v_lshrrev_b32 {vr(t+3)}, 4, {vr(t+2)}\nv_lshl_add_u32 {vr(d)}, {vr(t+3)}, 10, {vr(d)}")
        a(f"v_and_b32 {vr(t+1)}, 2, {vr(t+1)}\nv_xor_b32 {vr(t+2)}, {vr(t+2)}, {vr(t+1)}\nv_and_b32 {vr(t+2)}, 3, {vr(t+2)}")
        a(f"v_lshl_add_u32 {vr(d)}, {vr(t+2)}, 4, {vr(d)}")
        if i: a(f"s_sub_u32 s30, s30, 1024")
        a(f"v_add_u32 {vr(d)}, s30, {vr(d)}")
    a("s_waitcnt lgkmcnt(0)")
    stamp(a, 1, opt)
    srd(a, SRD_X, 4, 0x200000); srd(a, SRD_W, 6, 0x180000); srd(a, SRD_WS, 36, WS_SIZE)
    xf = opt.get("xf", ""); wf = opt.get("wf", "")
    def dma(c):
        st = c % 3
        L = [f"s_add_u32 s41, s40, {c}\ns_and_b32 s41, s41, 7\ns_lshl_b32 s44, s41, 7\ns_add_u32 m0, s42, {st*32768}\ns_mul_i32 s45, s41, 196608"]
        for i in range(4):
            L.append(f"buffer_load_dwordx4 {vr(vXo+i)}, s[{SRD_X}:{SRD_X+3}], s44 offen offset:{1024*i} {xf} lds")
        L.append(f"s_add_u32 m0, s43, {st*12288}\ns_nop 0\nbuffer_load_dwordx4 {vr(vWo)}, s[{SRD_W}:{SRD_W+3}], s45 offen {wf} lds")
        L.append(f"s_mov_b64 exec, s[46:47]\nbuffer_load_dwordx4 {vr(vWo+1)}, s[{SRD_W}:{SRD_W+3}], s45 offen offset:1024 {wf} lds\ns_mov_b64 exec, -1")
        return L
    for c in range(2):
        for x in dma(c): a(x)
    stamp(a, 2, opt)
    ntouch = 0
    if opt.get("touch", 0):
        a(f"s_and_b32 s29, s{sHP}, 3\ns_lshl_b32 s29, s29, 16\ns_lshl_b32 s30, s{sRB}, 18\ns_add_u32 s29, s29, s30\ns_lshl_b32 s30, s{sW}, 13\ns_add_u32 s29, s29, s30")
        a(f"v_lshlrev_b32 {vr(t)}, 7, v0\nbuffer_load_dword {vr(vTch)}, {vr(t)}, s[{SRD_X}:{SRD_X+3}], s29 offen {opt.get('tflag','')}")
        a(f"s_lshr_b32 s29, s2, 3\ns_mul_i32 s29, s29, 96\ns_mul_i32 s30, s{sW}, 12\ns_add_u32 s29, s29, s30")
        a(f"v_add_u32 {vr(t)}, s29, v0\nv_mul_u32_u24 {vr(t+1)}, 10923, {vr(t)}\nv_lshrrev_b32 {vr(t+1)}, 16, {vr(t+1)}")
        a(f"v_mul_u32_u24 {vr(t+2)}, 6, {vr(t+1)}\nv_sub_u32 {vr(t+2)}, {vr(t)}, {vr(t+2)}\nv_mul_u32_u24 {vr(t+1)}, 3072, {vr(t+1)}")
        a(f"v_lshrrev_b32 {vr(t+3)}, 1, {vr(t+2)}\nv_lshl_add_u32 {vr(t+1)}, {vr(t+3)}, 10, {vr(t+1)}")
        a(f"v_and_b32 {vr(t+2)}, 1, {vr(t+2)}\nv_lshl_add_u32 {vr(t+1)}, {vr(t+2)}, 7, {vr(t+1)}")
        a(f"s_lshr_b32 s29, s{sHP}, 2\ns_lshl_b32 s29, s29, 8\ns_mov_b64 exec, 0xfff")
        a(f"buffer_load_dword {vr(vTch+1)}, {vr(t+1)}, s[{SRD_W}:{SRD_W+3}], s29 offen {opt.get('tflag','')}\ns_mov_b64 exec, -1")
        ntouch = 2
    a(f"s_lshl_b32 s30, s{sP}, 4\ns_add_u32 s30, s30, s{sHP}\ns_lshl_b32 s31, s30, 17")
    a(f"s_lshl_b32 s{sFL}, s30, 11\ns_add_u32 s{sFL}, s{sFL}, {WS_F}\ns_add_u32 s29, s{sFL}, 1024")
    a(f"s_load_dword s{sNON}, s[36:37], s29")
    a(f"s_lshl_b32 s{sKB}, s{sHD}, 16\ns_add_u32 s{sKB}, s{sKB}, s31\ns_add_u32 s{sVB}, s31, {WS_V}")
    a(f"s_lshl_b32 s{sT0}, s{sRB}, 3\ns_lshl_b32 s29, s{sG}, 1\ns_add_u32 s{sT0}, s{sT0}, s29")
    a(f"v_bfe_u32 {vr(t)}, v0, 1, 3\nv_lshrrev_b32 {vr(t+1)}, 4, v0\nv_xor_b32 {vr(t)}, {vr(t)}, {vr(t+1)}\nv_lshlrev_b32 {vr(t)}, 4, {vr(t)}")
    a(f"v_and_b32 {vr(t+2)}, 15, v0\nv_lshl_add_u32 {vr(t)}, {vr(t+2)}, 7, {vr(t)}")
    a(f"s_lshl_b32 s29, s{sG}, 13\nv_add_u32 {vr(vXa)}, s29, {vr(t)}\nv_xor_b32 {vr(vXa+1)}, 64, {vr(vXa)}")
    a(f"v_add_u32 {vr(vXa+2)}, 0x10000, {vr(vXa)}\nv_add_u32 {vr(vXa+3)}, 0x10000, {vr(vXa+1)}")
    a(f"v_mul_u32_u24 {vr(t)}, 1536, {vr(t+1)}\nv_bfe_u32 {vr(t+2)}, v0, 2, 2\nv_lshl_add_u32 {vr(t)}, {vr(t+2)}, 6, {vr(t)}")
    a(f"v_and_b32 {vr(t+2)}, 3, v0\nv_lshl_add_u32 {vr(t)}, {vr(t+2)}, 3, {vr(t)}")
    a(f"v_xor_b32 {vr(t+1)}, s{sHD}, {vr(t+1)}\nv_and_b32 {vr(t+1)}, 1, {vr(t+1)}\nv_lshl_add_u32 {vr(t)}, {vr(t+1)}, 5, {vr(t)}")
    a(f"v_add_u32 {vr(vWa)}, {LDS_W}, {vr(t)}")
    def reads(c, s, fs):
        st = c % 3
        F = F1 + 28 * fs
        xa = vXa + s + (2 if st == 2 else 0)
        xi = 32768 if st == 1 else 0
        wi = st * 12288 + s * 6144
        W = lambda seg, u: f"ds_read_b64_tr_b16 {vr(F+16+4*seg+2*u,2)}, {vr(vWa)} offset:{wi + u*768 + seg*256}"
        X = lambda ts: f"ds_read_b128 {vr(F+4*ts,4)}, {vr(xa)} offset:{xi + ts*2048}"
        return [W(0, 0), W(0, 1), X(0), W(1, 0), W(1, 1), X(1), W(2, 0), W(2, 1), X(2), X(3)]
    def mfmas(fs, first):
        F = F1 + 28 * fs
        L = []
        for ts in range(4):
            L += [m16(aQ+4*ts, F+16, F+4*ts, first), m16(aK+4*ts, F+20, F+4*ts, first), m16(aV+4*ts, F+4*ts, F+24, first)]
        return L
    def weave(M, X, start=0):
        k = 0
        for i, m in enumerate(M):
            a(m)
            n = 0
            if i >= start:
                left = len(M) - i
                n = -(-(len(X) - k) // left)
            for _ in range(n):
                a(X[k]); k += 1
    early_constants(a, opt)
    stamp(a, 3, opt)
    a(f"s_waitcnt vmcnt({6+ntouch}) lgkmcnt(0)\ns_barrier")
    stamp(a, 4, opt)
    for x in reads(0, 0, 0): a(x)
    for c in range(8):
        M = mfmas(0, c == 0)
        X = reads(c, 1, 1)
        a("s_waitcnt lgkmcnt(0)")
        if opt.get("front", 1):
            D = dma(c + 2) if c + 2 < 8 else []
            for i in range(5):
                a(M[i]); a(X[2*i]); a(X[2*i+1])
            for i in range(5, 12):
                a(M[i])
                if i - 5 < len(D): a(D[i - 5])
        else:
            if c + 2 < 8: X = X[:6] + dma(c + 2)[:3] + X[6:] + dma(c + 2)[3:]
            weave(M, X)
        M = mfmas(1, False)
        a("s_waitcnt lgkmcnt(0)")
        if c < 7:
            for m in M[:3]: a(m)
            n = 6 if c + 2 < 8 else 0
            if c == 0: n += ntouch
            a(f"s_waitcnt vmcnt({n})\ns_barrier")
            if opt.get("front", 1):
                X = reads(c + 1, 0, 0)
                for i in range(3, 12):
                    a(M[i])
                    if i < 8: a(X[2*(i-3)]); a(X[2*(i-3)+1])
            else:
                weave(M[3:], reads(c + 1, 0, 0))
        else:
            a("s_barrier")
            for m in M: a(m)
    stamp(a, 5, opt)
    KA, KB, VA, VB = 20, 24, 28, 32
    a(f"s_mov_b32 s29, {f32hex(QSCALE)}")
    a(f"s_mul_i32 s{sNON}, s{sNON}, 1664525\ns_add_u32 s{sNON}, s{sNON}, 1013904223\nv_mov_b32 {vr(vNon)}, s{sNON}")
    a("s_mov_b32 s46, 0xffff\ns_mov_b32 s47, 0xffff\ns_nop 1")
    for ts in range(4):
        for i in range(2):
            a(f"v_cvt_pk_bf16_f32 {vr(KA+2*ts+i)}, {vr(aK+4*ts+2*i)}, {vr(aK+4*ts+2*i+1)}")
    for ts in range(4):
        for i in range(2):
            a(f"v_cvt_pk_bf16_f32 {vr(VA+2*ts+i)}, {vr(aV+4*ts+2*i)}, {vr(aV+4*ts+2*i+1)}")
    for K in (KA, KB):
        a(f"v_permlane16_swap_b32 {vr(K)}, {vr(K+2)}\nv_permlane16_swap_b32 {vr(K+1)}, {vr(K+3)}")
    for i, V in enumerate((VA, VB)):
        a(f"buffer_store_dwordx4 {vr(V,4)}, {vr(vVa)}, {WS}, s{sVB} offen offset:{2048*i} {opt.get('stf','sc1')}")
    for i, K in enumerate((KA, KB)):
        a(f"buffer_store_dwordx4 {vr(K,4)}, {vr(vKp)}, {WS}, s55 offen offset:{1024*i} {opt.get('stf','sc1')}")
    for i in range(2):
        a(f"ds_write_b128 {vr(vVa)}, {vr(VA+4*i,4)} offset:{2048*i}\nds_write_b128 {vr(vKw)}, {vr(KA+4*i,4)} offset:{1024*i}")
    for i in range(16): a(f"v_mul_f32 {vr(aQ+i)}, s29, {vr(aQ+i)}")
    for i in range(8): a(f"v_cvt_pk_bf16_f32 {vr(QA+i)}, {vr(aQ+2*i)}, {vr(aQ+2*i+1)}")
    a("s_nop 1")
    for Q in (QA, QB):
        a(f"v_permlane16_swap_b32 {vr(Q)}, {vr(Q+2)}\nv_permlane16_swap_b32 {vr(Q+1)}, {vr(Q+3)}")

KR, VR, IDX, vK, vV, vVb, vKl, vFl = 4, 228, 244, 245, 246, 247, 248, 249
vNon, vKp, vVa, vKw, vCn = 250, 251, 252, 253, 254
SX, SY, OA, OB, CA, CB = 132, 148, 164, 180, 196, 212

def smf(o, v, b): return f"v_smfmac_f32_32x32x32_bf16 {vr(o,16)}, {vr(v,4)}, {vr(b,8)}, {vr(IDX)}"
def qk(d, k, q, c="0"): return f"v_mfma_f32_32x32x16_bf16 {vr(d,16)}, {vr(k,4)}, {vr(q,4)}, {c}"

def step(X, Y, Oc, Op, Kn, Qn, Va, Vprev, extra, pos):
    L = []
    for i in range(16):
        for e in extra.get(i, []): L.append(e)
        if i == pos[0]: L.append(smf(Op, Vprev, Y + 8))
        if i == pos[1]: L.append(qk(Y, Kn, Qn))
        if i == pos[2]: L.append(smf(Oc, Va, X))
        L.append(f"v_exp_f32 {vr(X+i)}, {vr(X+i)}")
    return L

def add(d, k, items):
    d.setdefault(k, []); d[k] += items

def vread(V, off):
    return ["s_mov_b64 exec, s[46:47]", f"ds_read_b128 {vr(V,4)}, {vr(vVb)} offset:{off}", f"ds_read_b128 {vr(V+4,4)}, {vr(vVb)} offset:{off+1024}", "s_mov_b64 exec, -1"]

class VM:
    def __init__(self): self.ops = []
    def issue(self, tag): self.ops.append(tag)
    def wait(self, tag):
        if tag not in self.ops: return []
        k = len(self.ops) - 1 - max(i for i, x in enumerate(self.ops) if x == tag)
        self.ops = self.ops[len(self.ops) - k:] if k else []
        return [f"s_waitcnt vmcnt({k})"]

def body(opt, t0, vm=None, preA=None, tail=None):
    pos = opt.get("pos", (2, 5, 10)); vpos = opt.get("vpos", 13); kpos = opt.get("kpos", 13)
    L = []
    for j in range(4):
        K0 = KR + 4 * j; K1 = KR + 4 * ((j + 1) & 3)
        V0 = VR + 8 * (j & 1); V1 = VR + 8 * ((j + 1) & 1)
        exA = {}; exB = {}
        if preA and j in preA: add(exA, 0, preA[j](vm))
        rd = []
        if j == 3: rd.append(f"v_add_u32 {vr(vVb)}, s{sVO}, {vr(vV)}")
        add(exA, vpos, rd + vread(V1, ((j + 1) & 3) * 2048))
        add(exA, pos[2], ["s_waitcnt lgkmcnt(0)" if vpos >= pos[2] else "s_waitcnt lgkmcnt(2)"])
        add(exB, pos[1], vm.wait(f"K{t0+j+1}") if vm else ["s_waitcnt vmcnt(2)"])
        add(exB, kpos, [f"buffer_load_dwordx4 {vr(K0,4)}, {vr(vK)}, {WS}, s{sKO} offen offset:{1024*j} sc1"])
        if vm: vm.issue(f"K{t0+j+4}")
        if j == 3 and tail: add(exB, 14, tail)
        L += step(SX, SY, OA, OB, K0, QB, V0, V1 + 4, exA, pos)
        L += step(SY, SX, OB, OA, K1, QA, V0, V0 + 4, exB, pos)
    return L

def adv():
    return [f"s_add_u32 s{sTO}, s{sTO}, 4096", f"s_and_b32 s{sTO}, s{sTO}, 0xffff", f"s_add_u32 s{sKO}, s{sTO}, s{sKB}", f"s_lshl_b32 s{sVO}, s{sTO}, 1"]

def spin(lab, issue, test):
    return [f"s_cbranch_scc1 {lab}_ok", "s_mov_b32 s98, 0", f"{lab}_spin:", "s_add_u32 s98, s98, 1", "s_cmp_gt_u32 s98, 0x40000",
            f"s_cbranch_scc1 {lab}_ok", "s_sleep 1"] + issue + ["s_waitcnt vmcnt(0)"] + test + [f"s_cbranch_scc0 {lab}_spin", f"{lab}_ok:"]

def ptest(): return [f"v_cmp_eq_u32 vcc, s{sNON}, {vr(vT)}", "s_nop 1", "s_cmp_eq_u64 vcc, -1"]

def vdma(c, vm):
    L = [f"s_add_u32 s30, s{sRB}, {c}", "s_and_b32 s30, s30, 7", "s_lshl_b32 s30, s30, 14", "s_add_u32 m0, s30, s99", "s_add_u32 s30, s30, s100"]
    for i in range(2):
        L.append(f"buffer_load_dwordx4 {vr(vK)}, {WS}, s30 offen offset:{1024*i} sc1 lds"); vm.issue(f"V{c}")
    return L
KF = KR
KO = 76

def st_(opt, i): return [f"s_memtime s[{60+2*i}:{61+2*i}]"] if opt.get("stamp") else []

def own_chunk(opt, vm):
    pos = opt.get("pos", (2, 5, 10)); vpos = opt.get("vpos", 13)
    tf, tp, tc = opt.get("sync", (3, 4, 5))
    out = []
    poll1 = [f"buffer_load_dword {vr(vT)}, {vr(vT+1)}, {WS}, s{sFL} offen sc1"]
    for j in range(8):
        K0 = KO + 4 * (j & 1); K1 = (KO + 4 * ((j + 1) & 1)) if j < 7 else KF
        V0 = VR + 8 * (j & 1); V1 = VR + 8 * ((j + 1) & 1)
        exA = {}; exB = {}
        pre = []
        if j == tf:
            pre += [f"v_mov_b32 {vr(vT+2)}, 1", "s_waitcnt vmcnt(0)", "s_mov_b64 exec, 1", f"ds_add_rtn_u32 {vr(vT+2)}, {vr(vCn)}, {vr(vT+2)}",
                    f"s_lshl_b32 s29, s{sRB}, 7", f"v_mov_b32 {vr(vT+3)}, s29", "s_waitcnt lgkmcnt(0)", f"v_cmp_eq_u32 vcc, 7, {vr(vT+2)}", "s_and_saveexec_b64 s[58:59], vcc",
                    "s_cbranch_execz own_notlast", f"buffer_store_dword {vr(vNon)}, {vr(vT+3)}, {WS}, s{sFL} offen {opt.get('flf','sc1')}", "own_notlast:", "s_mov_b64 exec, -1"] + st_(opt, 7)
            vm.ops = []
        if j == tp:
            pre += [f"s_add_u32 s29, s{sRB}, 1", "s_and_b32 s29, s29, 7", "s_lshl_b32 s29, s29, 7", f"v_mov_b32 {vr(vT+1)}, s29"] + poll1
        if j == tc:
            pre += ["s_waitcnt vmcnt(0)"] + ptest() + spin("own", poll1, ptest()) + st_(opt, 8)
            vm.ops = []
            for i in range(4):
                pre.append(f"buffer_load_dwordx4 {vr(KF+4*i,4)}, {vr(vK)}, {WS}, s{sKO} offen offset:{1024*i} sc1"); vm.issue(f"K{8+i}")
            pre += [f"s_lshl_b32 s99, s{sW}, 11", f"s_add_u32 s100, s{sVB}, s99"] + vdma(1, vm)
        if j == 7:
            pre += vm.wait("V1") + ["s_barrier"] + st_(opt, 9) + [f"v_add_u32 {vr(vVb)}, s{sVO}, {vr(vV)}"]
        add(exA, 0, pre)
        rd = []
        if j < 7: rd += [f"ds_read_b128 {vr(K1,4)}, {vr(vKl)} offset:{1024*(j+1)}"]
        vp = min(vpos, 8) if j < 7 else vpos
        add(exA, vp, rd + vread(V1, (j + 1) * 2048 if j < 7 else 0))
        if j == 0 or j == 7: add(exA, pos[2], ["s_waitcnt lgkmcnt(3)" if (j == 0 and vp < pos[2]) else "s_waitcnt lgkmcnt(0)"])
        if j < 7: add(exB, pos[1], ["s_waitcnt lgkmcnt(0)"])
        if j == 7: add(exB, 14, adv())
        out += step(SX, SY, OA, OB, K0, QB, V0, V1 + 4, exA, pos)
        out += step(SY, SX, OB, OA, K1, QA, V0, V0 + 4, exB, pos)
    return out

def phase2(a, opt):
    t = vT
    a("s_waitcnt lgkmcnt(0)\ns_barrier")
    stamp(a, 6, opt)
    a(f"ds_read_b128 {vr(KO,4)}, {vr(vKl)}")
    for x in vread(VR, 0): a(x)
    a("s_waitcnt lgkmcnt(2)")
    a(qk(SX, KO, QA))
    a("s_nop 7\ns_nop 3")
    vm = VM()
    own = own_chunk(opt, vm)
    own += st_(opt, 10)
    poll2 = [f"buffer_load_dword {vr(vT)}, {vr(vFl)}, {WS}, s{sFL} offen sc1"]
    def p2(vm): vm.issue("P2"); return poll2
    b1 = body(opt, 8, vm, preA={0: p2}, tail=adv())
    b1 += vm.wait("P2") + ptest() + spin("all", poll2, ptest())
    b1 += [f"s_add_u32 s29, s{sRB}, s{sW}", "s_cmp_lg_u32 s29, 0", "s_cbranch_scc1 att_noepoch", "s_mov_b64 exec, 1", f"v_mov_b32 {vr(t+2)}, 1024",
           f"buffer_store_dword {vr(vNon)}, {vr(t+2)}, {WS}, s{sFL} offen sc1", "s_mov_b64 exec, -1", "att_noepoch:"]
    b2 = body(opt, 12, vm, preA={0: lambda vm: vdma(2, vm), 1: lambda vm: vdma(3, vm) + vdma(4, vm), 2: lambda vm: vdma(5, vm) + vdma(6, vm),
                                 3: lambda vm: vm.wait("V2") + ["s_barrier"] + vdma(7, vm)}, tail=adv())
    b3 = body(opt, 16, vm, tail=adv())
    assert vm.ops == ["K21", "K22", "K23"], vm.ops
    b3 += ["s_barrier"]
    first = b1 + b2 + b3
    for x in own + first: a(x)
    if opt.get("prio", 3):
        a(f"s_cmp_eq_u32 s{sHD}, 0\ns_cbranch_scc1 att_noprio\ns_setprio 1\natt_noprio:")
    a(f"s_mov_b32 s{sCNT}, 11")
    a(".p2align 6")
    a.label("att_loop")
    tail = adv() + [f"s_sub_u32 s{sCNT}, s{sCNT}, 1"]
    if opt.get("prio", 3):
        tail += [f"s_cmp_lg_u32 s{sCNT}, {opt.get('prio', 3)}", "s_cbranch_scc1 att_keepprio", "s_setprio 0", "att_keepprio:"]
    tail += [f"s_cmp_lg_u32 s{sCNT}, 0"]
    B = body(opt, 0, None, tail=tail)
    for x in B: a(x)
    a("s_cbranch_scc1 att_loop")
    stamp(a, 11, opt)
    fin = ["s_nop 1", smf(OB, VR + 12, SY + 8)]
    for x in fin: a(x)
    errs = check_linear(own + first + B + B + fin, "att")
    for e in errs[:5]: print("HAZARD", len(errs), e, file=sys.stderr)
    a(f"s_mov_b32 s29, {f32hex(2.0**-60)}\ns_mov_b32 s30, {f32hex(2.0**60)}\ns_mov_b32 s31, 0x7f800000")
    a(f"v_cmp_le_f32 s[58:59], s29, {vr(OA+8)}\nv_cmp_ge_f32 vcc, s30, {vr(OA+8)}")
    a(f"v_add_f32 {vr(t)}, abs({vr(OA)}), abs({vr(OA+1)})")
    for i in range(2, 8): a(f"v_add_f32 {vr(t)}, {vr(t)}, abs({vr(OA+i)})")
    a("s_and_b64 s[58:59], s[58:59], vcc")
    a(f"v_cmp_le_f32 vcc, s29, {vr(OB+8)}")
    for i in range(8): a(f"v_add_f32 {vr(t)}, {vr(t)}, abs({vr(OB+i)})")
    a("s_and_b64 s[58:59], s[58:59], vcc")
    a(f"v_cmp_ge_f32 vcc, s30, {vr(OB+8)}\ns_nop 1\ns_and_b64 s[58:59], s[58:59], vcc")
    a(f"v_cmp_gt_f32 vcc, s31, {vr(t)}\ns_nop 1\ns_and_b64 s[58:59], s[58:59], vcc")
    a("s_cmp_eq_u64 s[58:59], -1")
    if opt.get("forcefb"): a("s_branch att_fallback")
    a("s_cbranch_scc0 att_fallback")
    a.label("att_finish")
    a(f"v_rcp_f32 {vr(t+8)}, {vr(OA+8)}\nv_rcp_f32 {vr(t+9)}, {vr(OB+8)}")
    a(f"v_and_b32 {vr(t+10)}, 16, v0\nv_lshlrev_b32 {vr(t+10)}, 6, {vr(t+10)}\nv_lshrrev_b32 {vr(t+11)}, 5, v0\nv_lshl_add_u32 {vr(t+10)}, {vr(t+11)}, 8, {vr(t+10)}")
    a(f"v_and_b32 {vr(t+11)}, 15, v0\nv_lshl_add_u32 {vr(t+10)}, {vr(t+11)}, 4, {vr(t+10)}")
    a(f"s_lshl_b32 s30, s{sP}, 6\ns_add_u32 s30, s30, s{sT0}\ns_lshl_b32 s30, s30, 15\ns_lshl_b32 s29, s{sHP}, 11\ns_add_u32 s30, s30, s29")
    a(f"s_lshl_b32 s29, s{sHD}, 9\ns_add_u32 s30, s30, s29\ns_add_u32 s30, s30, {WS_O}\ns_add_u32 s31, s30, 32768")
    for O, tt, r, so in ((OA, t, t + 8, 30), (OB, t + 4, t + 9, 31)):
        for i in range(8): a(f"v_mul_f32 {vr(O+i)}, {vr(O+i)}, {vr(r)}")
        for i in range(4): a(f"v_cvt_pk_bf16_f32 {vr(tt+i)}, {vr(O+2*i)}, {vr(O+2*i+1)}")
        a(f"buffer_store_dwordx4 {vr(tt,4)}, {vr(t+10)}, {WS}, s{so} offen")
    stamp(a, 12, opt)

def fallback(a, opt):
    t = vT
    a.label("att_fallback")
    a("s_waitcnt vmcnt(0) lgkmcnt(0)\ns_setprio 0")
    a(f"v_mov_b32 {vr(t)}, 0xff800000\nv_mov_b32 {vr(t+2)}, 0xff800000\ns_mov_b32 s{sCNT}, 0")
    a.label("fb_max")
    a(f"s_lshl_b32 s29, s{sCNT}, 10\ns_add_u32 s29, s29, s{sKB}")
    a(f"buffer_load_dwordx4 {vr(KR,4)}, {vr(vK)}, {WS}, s29 offen sc1\ns_waitcnt vmcnt(0)")
    a(qk(SX, KR, QA)); a(qk(SY, KR, QB)); a("s_nop 7\ns_nop 7")
    for S, tt in ((SX, t), (SY, t + 2)):
        for i in range(0, 16, 2): a(f"v_max3_f32 {vr(tt)}, {vr(tt)}, {vr(S+i)}, {vr(S+i+1)}")
    a(f"s_add_u32 s{sCNT}, s{sCNT}, 1\ns_cmp_lt_u32 s{sCNT}, 64\ns_cbranch_scc1 fb_max")
    a(f"v_mov_b32 {vr(t+1)}, {vr(t)}\nv_mov_b32 {vr(t+3)}, {vr(t+2)}\ns_nop 1")
    a(f"v_permlane32_swap_b32 {vr(t)}, {vr(t+1)}\nv_permlane32_swap_b32 {vr(t+2)}, {vr(t+3)}")
    for C, tt in ((CA, t), (CB, t + 2)):
        for i in range(16): a(f"v_min_f32 {vr(C+i)}, -{vr(tt)}, -{vr(tt+1)}")
    for i in range(32): a(f"v_mov_b32 {vr(OA+i)}, 0")
    a(f"s_mov_b32 s{sCNT}, 0")
    a.label("fb_sum")
    a(f"s_lshl_b32 s29, s{sCNT}, 10\ns_add_u32 s29, s29, s{sKB}\ns_lshl_b32 s30, s{sCNT}, 11\nv_add_u32 {vr(vVb)}, s30, {vr(vV)}")
    a(f"buffer_load_dwordx4 {vr(KR,4)}, {vr(vK)}, {WS}, s29 offen sc1")
    for x in vread(VR, 0): a(x)
    a("s_waitcnt vmcnt(0) lgkmcnt(0)")
    a(qk(SX, KR, QA, vr(CA, 16))); a(qk(SY, KR, QB, vr(CB, 16))); a("s_nop 7\ns_nop 7")
    for i in range(32): a(f"v_exp_f32 {vr(SX+i)}, {vr(SX+i)}")
    a("s_nop 1")
    a(smf(OA, VR, SX)); a(smf(OB, VR, SY)); a(smf(OA, VR + 4, SX + 8)); a(smf(OB, VR + 4, SY + 8))
    a(f"s_add_u32 s{sCNT}, s{sCNT}, 1\ns_cmp_lt_u32 s{sCNT}, 64\ns_cbranch_scc1 fb_sum")
    a("s_nop 7\ns_nop 7\ns_branch att_finish")

def phase3(a, opt):
    vOo, vWs, vOa, vWr, F, acc, t = 4, 5, 9, 12, 20, 84, 100
    a(f"s_lshr_b32 s29, s{sHP}, 2\ns_lshl_b32 s29, s29, 1\ns_lshl_b32 s30, s{sRB}, 3\ns_add_u32 s49, s29, s30")
    a(f"s_and_b32 s50, s{sHP}, 3")
    a(f"s_lshl_b32 s30, s{sP}, 6\ns_add_u32 s30, s30, s49\ns_add_u32 s30, s30, s{sHD}\ns_lshl_b32 s30, s30, 15")
    a(f"s_lshl_b32 s31, s{sG}, 11\ns_add_u32 s30, s30, s31\ns_add_u32 s51, s30, {WS_O}")
    a(f"v_lshlrev_b32 {vr(vOo)}, 4, v0")
    a(f"v_lshrrev_b32 {vr(t)}, 4, v0\nv_lshlrev_b32 {vr(t+1)}, 1, {vr(t)}\nv_bfe_u32 {vr(t+2)}, v0, 1, 3\nv_xor_b32 {vr(t+1)}, {vr(t+1)}, {vr(t+2)}")
    a(f"v_lshlrev_b32 {vr(t)}, 10, {vr(t)}\nv_lshl_add_u32 {vr(t)}, {vr(t+1)}, 5, {vr(t)}\nv_and_b32 {vr(t+1)}, 1, v0\nv_lshl_add_u32 {vr(t)}, {vr(t+1)}, 4, {vr(t)}")
    a(f"s_lshl_b32 s30, s50, 8\ns_lshl_b32 s31, s{sW}, 14\ns_add_u32 s30, s30, s31\nv_add_u32 {vr(vWs)}, s30, {vr(t)}")
    a(f"v_xor_b32 {vr(vWs+1)}, 32, {vr(vWs)}\nv_add_u32 {vr(vWs+1)}, 3072, {vr(vWs+1)}")
    a(f"v_add_u32 {vr(vWs+2)}, 6144, {vr(vWs)}\nv_add_u32 {vr(vWs+3)}, 6144, {vr(vWs+1)}")
    a(f"s_lshl_b32 s42, s{sW}, 11\ns_lshl_b32 s43, s{sW}, 12\ns_add_u32 s43, s43, 16384")
    a("s_waitcnt lgkmcnt(0)")
    srd(a, SRD_W, 32, 0x80000); srd(a, SRD_WS, 36, WS_SIZE); srd(a, SRD_O, 34, 0x400000)
    def dma(c):
        st = (c % 3) * 49152
        L = [f"s_add_u32 s44, s51, {c*8192}\ns_add_u32 m0, s42, {st}\ns_mov_b32 s45, {c*131072}"]
        for i in range(2):
            L.append(f"buffer_load_dwordx4 {vr(vOo)}, {WS}, s44 offen offset:{1024*i} lds")
        L.append(f"s_add_u32 m0, s43, {st}\ns_nop 0")
        for i in range(4):
            L.append(f"buffer_load_dwordx4 {vr(vWs+i)}, s[{SRD_W}:{SRD_W+3}], s45 offen offset:{1024*i} lds")
        return L
    for c in range(2):
        for x in dma(c): a(x)
    a(f"s_lshl_b32 s29, s{sHD}, 13\nv_add_u32 {vr(vOa)}, s29, {vr(vOo)}")
    a(f"v_lshrrev_b32 {vr(t)}, 5, v0\nv_lshlrev_b32 {vr(t)}, 12, {vr(t)}\nv_bfe_u32 {vr(t+1)}, v0, 4, 1\nv_lshl_add_u32 {vr(t)}, {vr(t+1)}, 10, {vr(t)}")
    a(f"v_bfe_u32 {vr(t+2)}, v0, 2, 2\nv_lshl_add_u32 {vr(t)}, {vr(t+2)}, 8, {vr(t)}\nv_lshl_add_u32 {vr(t+1)}, {vr(t+2)}, 1, {vr(t+1)}")
    a(f"s_lshl_b32 s29, s{sG}, 1\nv_xor_b32 {vr(t+1)}, s29, {vr(t+1)}\nv_lshl_add_u32 {vr(t)}, {vr(t+1)}, 5, {vr(t)}")
    a(f"v_and_b32 {vr(t+1)}, 3, v0\nv_lshl_add_u32 {vr(t)}, {vr(t+1)}, 3, {vr(t)}\nv_add_u32 {vr(vWr)}, 16384, {vr(t)}\nv_xor_b32 {vr(vWr+1)}, 32, {vr(vWr)}")
    for k in (1, 2):
        a(f"v_add_u32 {vr(vWr+2*k)}, {49152*k}, {vr(vWr)}\nv_add_u32 {vr(vWr+2*k+1)}, {49152*k}, {vr(vWr+1)}\nv_add_u32 {vr(vOa+k)}, {49152*k}, {vr(vOa)}")
    a(f"v_and_b32 {vr(t)}, 15, v0\nv_lshlrev_b32 {vr(t)}, 11, {vr(t)}\nv_bfe_u32 {vr(t+1)}, v0, 4, 1\nv_lshl_add_u32 {vr(t)}, {vr(t+1)}, 5, {vr(t)}")
    a(f"v_lshrrev_b32 {vr(t+1)}, 5, v0\nv_lshl_add_u32 {vr(t)}, {vr(t+1)}, 4, {vr(t)}")
    a(f"s_add_u32 s29, s49, s{sHD}\ns_lshl_b32 s29, s29, 16\ns_lshl_b32 s30, s{sP}, 10\ns_add_u32 s29, s29, s30")
    a(f"s_lshl_b32 s30, s50, 8\ns_add_u32 s29, s29, s30\ns_lshl_b32 s30, s{sG}, 6\ns_add_u32 s52, s29, s30\ns_add_u32 s53, s52, 32768")
    def reads(n):
        c, s = n >> 2, n & 3
        st = c % 3
        Fr = F + 16 * (n & 3)
        L = [f"ds_read_b128 {vr(Fr+4*sub,4)}, {vr(vOa+st)} offset:{s*2048 + sub*1024}" for sub in range(2)]
        for jt in range(2):
            for u in range(2):
                L.append(f"ds_read_b64_tr_b16 {vr(Fr+8+4*jt+2*u,2)}, {vr(vWr+2*st+jt)} offset:{s*8192 + u*2048}")
        return L
    stamp(a, 1, opt)
    a("s_waitcnt vmcnt(6)\ns_barrier")
    stamp(a, 2, opt)
    for x in dma(2): a(x)
    for n in range(2):
        for x in reads(n): a(x)
    for n in range(16):
        Fr = F + 16 * (n & 3)
        a(f"s_waitcnt lgkmcnt({6 if n < 15 else 0})")
        if n == 3:
            a("s_barrier")
            for x in dma(3): a(x)
        Rd = []
        if n + 2 < 16:
            if (n + 2) & 3 == 0:
                c1 = (n + 2) >> 2
                a(f"s_waitcnt vmcnt({6 if c1 < 3 else 0})\ns_barrier")
            Rd = reads(n + 2)
        k = 0
        for sub in range(2):
            for jt in range(2):
                a(m16(acc + 8*sub + 4*jt, Fr + 8 + 4*jt, Fr + 4*sub, n == 0))
                for x in Rd[k:k + (2 if k < 4 else 1)]: a(x)
                k += 2 if k < 4 else 1
    stamp(a, 3, opt)
    a("s_nop 7")
    for sub in range(2):
        for jt in range(2):
            for i in range(2):
                a(f"v_cvt_pk_bf16_f32 {vr(F+4*sub+2*jt+i)}, {vr(acc+8*sub+4*jt+2*i)}, {vr(acc+8*sub+4*jt+2*i+1)}")
    a("s_nop 1")
    for sub in range(2):
        a(f"v_permlane16_swap_b32 {vr(F+4*sub)}, {vr(F+4*sub+2)}\nv_permlane16_swap_b32 {vr(F+4*sub+1)}, {vr(F+4*sub+3)}")
    for sub in range(2):
        a(f"buffer_store_dwordx4 {vr(F+4*sub,4)}, {vr(t)}, s[{SRD_O}:{SRD_O+3}], s{52+sub} offen")
    stamp(a, 4, opt)

def kernel(a, name, need, fns, opt, nstamp, sbase, post=None):
    a(f".globl {name}\n.p2align 8\n.type {name},@function")
    a.label(name)
    if opt.get("stamp"):
        a("s_memrealtime s[88:89]")
        stamp(a, 0, opt)
    n0 = len(a.lines)
    prologue(a, name, need)
    for fn in fns: fn(a, opt)
    errs = check_linear(a.lines[n0:], name)
    for e in errs[:5]: print("HAZARD", len(errs), e, file=sys.stderr)
    dump_stamps(a, nstamp, opt, sbase)
    a.label(name + "_end")
    a("s_endpgm")
    if post:
        n0 = len(a.lines)
        post(a, opt)
        errs = check_linear(a.lines[n0:], name)
        for e in errs[:5]: print("HAZARD", len(errs), e, file=sys.stderr)

def kd(name, vgpr):
    return f""".amdhsa_kernel {name}
  .amdhsa_next_free_vgpr {vgpr}
  .amdhsa_next_free_sgpr 102
  .amdhsa_accum_offset {vgpr}
  .amdhsa_group_segment_fixed_size 0
  .amdhsa_kernarg_size 72
  .amdhsa_user_sgpr_count 2
  .amdhsa_user_sgpr_kernarg_segment_ptr 1
  .amdhsa_system_sgpr_workgroup_id_x 1
  .amdhsa_float_denorm_mode_32 3
.end_amdhsa_kernel
"""

def build(opt):
    ref = open("cdna_kernels/" + NAME + ".s.ref").read().split("\n")
    hdr = [l for l in ref if l.startswith(";") and "@launch" not in l]
    out = "\n".join(hdr) + "\n"
    out += "; @launch kernel=att_kernel grid=(256,1,1) block=(512,1,1) lds=148480\n"
    out += "; @launch kernel=prj_kernel grid=(256,1,1) block=(512,1,1) lds=147456\n"
    out += '.amdgcn_target "amdgcn-amd-amdhsa--gfx950"\n.text\n'
    a = Asm()
    kernel(a, "att_kernel", {'x'}, [phase1, phase2], opt, 13, WS_S, fallback)
    o3 = dict(opt); o3["rt"] = (2, 3)
    kernel(a, "prj_kernel", {'wo'}, [phase3], o3, 5, WS_S + 0x20000)
    out += a.text()
    out += '.section .rodata,"a"\n.p2align 6\n'
    out += kd("att_kernel", 256) + ".p2align 6\n" + kd("prj_kernel", 128)
    return out

if __name__ == "__main__":
    import json
    opt = json.loads(sys.argv[2]) if len(sys.argv) > 2 else {}
    open(sys.argv[1], "w").write(build(opt))
```

```python
from asmlib import Asm, vr, sr
def diag_kernel(a, WS_SIZE, bases, expr, K):
    a(".globl diag_kernel\n.p2align 8\n.type diag_kernel,@function")
    a.label("diag_kernel")
    a("s_memrealtime s[60:61]")
    a("s_cmp_ge_u32 s2, 1\ns_cbranch_scc1 diag_end")
    a("s_load_dwordx2 s[36:37], s[0:1], 64")
    a("s_waitcnt lgkmcnt(0)")
    a(f"s_mov_b32 s16, s36\ns_mov_b32 s17, s37\ns_mov_b32 s18, {WS_SIZE}\ns_mov_b32 s19, 0x20000")
    a("v_lshlrev_b32 v1, 6, v0")
    for k, (base, col) in enumerate(bases):
        a("v_mov_b32 v4, -1\nv_mov_b32 v5, 0\nv_mov_b32 v6, 0\nv_mov_b32 v7, 0")
        a(f"s_mov_b32 s20, {base}\ns_mov_b32 s21, 32")
        a.label(f"diag_l{k}")
        a("buffer_load_dwordx2 v[8:9], v1, s[16:19], s20 offen offset:56")
        a(f"buffer_load_dword v10, v1, s[16:19], s20 offen offset:{4*col}")
        a("s_waitcnt vmcnt(0)")
        a("v_min_u32 v4, v4, v8\nv_max_u32 v5, v5, v9\nv_max_u32 v6, v6, v8\nv_max_u32 v7, v7, v10")
        a(f"s_add_u32 s20, s20, 4096\ns_sub_u32 s21, s21, 1\ns_cmp_lg_u32 s21, 0\ns_cbranch_scc1 diag_l{k}")
        a(f"s_mov_b32 s{40+4*k}, -1\ns_mov_b32 s{41+4*k}, 0\ns_mov_b32 s{42+4*k}, 0\ns_mov_b32 s{43+4*k}, 0\ns_mov_b32 s21, 0")
        a.label(f"diag_r{k}")
        a("v_readlane_b32 s22, v4, s21\nv_readlane_b32 s23, v5, s21\nv_readlane_b32 s24, v6, s21\nv_readlane_b32 s25, v7, s21\ns_nop 3")
        a(f"s_min_u32 s{40+4*k}, s{40+4*k}, s22\ns_max_u32 s{41+4*k}, s{41+4*k}, s23\ns_max_u32 s{42+4*k}, s{42+4*k}, s24\ns_max_u32 s{43+4*k}, s{43+4*k}, s25")
        a(f"s_add_u32 s21, s21, 1\ns_cmp_lt_u32 s21, 64\ns_cbranch_scc1 diag_r{k}")
    for x in expr: a(x)
    a(f"s_mul_i32 s70, s70, {K}\ns_min_u32 s70, s70, 200000")
    a("s_memrealtime s[62:63]\ns_waitcnt lgkmcnt(0)")
    a.label("diag_spin")
    a("s_memrealtime s[64:65]\ns_waitcnt lgkmcnt(0)\ns_sub_u32 s66, s64, s62\ns_cmp_lt_u32 s66, s70\ns_cbranch_scc1 diag_spin")
    a.label("diag_end")
    a("s_endpgm")
```

```python
import sys, json
sys.path.insert(0, "gen")
import importlib, diag
from asmlib import Asm
def mk(gen, name, opt, expr, K, regions):
    o = dict(opt); o["stamp"] = 1
    s = gen.build(o)
    a = Asm()
    diag.diag_kernel(a, gen.WS_SIZE, regions, expr, K)
    s = s.replace('.section .rodata,"a"', a.text() + '.section .rodata,"a"') + ".p2align 6\n" + gen.kd("diag_kernel", 32)
    s = s.replace(".amdgcn_target", "; @launch kernel=diag_kernel grid=(1,1,1) block=(64,1,1) lds=0\n.amdgcn_target")
    open("gen/" + name, "w").write(s)
if __name__ == "__main__":
    gen = importlib.import_module(sys.argv[1])
    opt = json.loads(sys.argv[2]) if len(sys.argv) > 2 else {}
    B = gen.WS_S
    R = lambda c0, c1: [(B, c0), (B + 0x20000, c1)]
    mk(gen, "d0.s", opt, ["s_mov_b32 s70, 0"], 0, R(4, 4))
    mk(gen, "d1.s", opt, ["s_sub_u32 s70, s60, s40"], 10, R(4, 4))
    mk(gen, "d2.s", opt, ["s_sub_u32 s70, s41, s40"], 10, R(4, 4))
    mk(gen, "d3.s", opt, ["s_lshr_b32 s70, s43, 4"], 10, R(4, 4))
    mk(gen, "d4.s", opt, ["s_lshr_b32 s70, s43, 4"], 10, R(6, 4))
    mk(gen, "d5.s", opt, ["s_lshr_b32 s70, s43, 4"], 10, R(10, 4))
```

```python
import sys, json, importlib
sys.path.insert(0, "gen")
import diag
from asmlib import Asm
def mk(gen, name, opt, expr, K, col=3):
    o = dict(opt); o["stamp"] = 1; o.setdefault("stamps", [0, col])
    s = gen.build(o)
    a = Asm()
    diag.diag_kernel(a, gen.WS_SIZE, [(gen.WS_S, col)], expr, K)
    s = s.replace('.section .rodata,"a"', a.text() + '.section .rodata,"a"') + ".p2align 6\n" + gen.kd("diag_kernel", 32)
    kn = gen.NAME + "_kernel"
    s = s.replace("; @launch grid=", f"; @launch kernel={kn} grid=")
    s = s.replace(".amdgcn_target", "; @launch kernel=diag_kernel grid=(1,1,1) block=(64,1,1) lds=0\n.amdgcn_target")
    open("gen/" + name, "w").write(s)
TOTAL = ["s_sub_u32 s70, s60, s40"]
SPAN = ["s_sub_u32 s70, s41, s40"]
if __name__ == "__main__":
    gen = importlib.import_module(sys.argv[2])
    mode = sys.argv[4] if len(sys.argv) > 4 else "total"
    mk(gen, sys.argv[1], json.loads(sys.argv[3]), {"total": TOTAL, "span": SPAN, "zero": ["s_mov_b32 s70, 0"]}[mode], 10)
```

```python
import sys, math, struct
from asmlib import Asm, vr, sr, check_linear

NAME = "concat_heads__mha_block__softmax_full_mha__prompt"
WS_K, WS_V, WS_O = 0, 4 << 20, 8 << 20
WS_F = 12 << 20
WS_S = 13 << 20
WS_SIZE = 14 << 20
QSCALE = 0.25 * math.log2(math.e)
LDS_W, LDS_K, LDS_C, LDS_ST = 98304, 131072, 147456, 131072

def f32hex(x): return "0x%08x" % struct.unpack("<I", struct.pack("<f", x))[0]

sW = 3
sP, sHP, sRB, sHD, sG = 24, 25, 26, 27, 28
SRD_X, SRD_W, SRD_WS, SRD_O = 8, 12, 16, 20
WS = f"s[{SRD_WS}:{SRD_WS+3}]"; WW = f"s[{SRD_W}:{SRD_W+3}]"; XX = f"s[{SRD_X}:{SRD_X+3}]"
sFL2, sNON2 = 38, 39
sKB, sT0, sFL, sNON, sKO, sVO, sTO, sKS, sCNT, sVB = 48, 49, 50, 51, 52, 53, 54, 55, 56, 57
sOA, sOB, sST, sWB = 4, 5, 6, 7
sSPIN, sV0, sV1 = 98, 99, 100
sXCC, sFAST = 101, 43
WO = 4
vXo, vWo, vXa, vWa, vTch = 4, 8, 10, 14, 16
F1 = 20; aQ, aK, aV = 76, 92, 108
KO = 4
vKl, vCn, vKp, vVa, vKw = 124, 125, 126, 127, 128
QA, QB, SX, SY, OA, OB, KR, VR = 132, 136, 140, 156, 172, 188, 204, 220
IDX, vK, vV, vVb, vFl, vNon, vOs, vWs, vWr = 236, 237, 238, 239, 240, 241, 242, 243, 244
vT = 248

class VM:
    def __init__(self): self.ops = []
    def issue(self, tag, n=1): self.ops += [tag] * n
    def wait(self, tag):
        if tag not in self.ops: return []
        k = len(self.ops) - 1 - max(i for i, x in enumerate(self.ops) if x == tag)
        self.ops = self.ops[len(self.ops) - k:] if k else []
        return [f"s_waitcnt vmcnt({k})"]

def srd(a, d, lo, size):
    a(f"s_mov_b32 s{d}, s{lo}\ns_mov_b32 s{d+1}, s{lo+1}\ns_mov_b32 s{d+2}, {size}\ns_mov_b32 s{d+3}, 0x20000")
def st_(opt, i):
    if not opt.get("stamp") or i not in opt.get("stamps", range(14)): return []
    return [f"{'s_memrealtime' if opt.get('abs') else 's_memtime'} s[{60+2*i}:{61+2*i}]"]
def emit(a, L):
    for x in L: a(x)
def m16(d, A, B, first=False):
    return f"v_mfma_f32_16x16x32_bf16 {vr(d,4)}, {vr(A,4)}, {vr(B,4)}, {'0' if first else vr(d,4)}"
def lcg(s): return f"s_mul_i32 s{s}, s{s}, 1664525\ns_add_u32 s{s}, s{s}, 1013904223"

def dump_stamps(a, opt):
    if not opt.get("stamp"): return
    a("s_memrealtime s[90:91]\ns_waitcnt lgkmcnt(0)")
    a(f"s_lshl_b32 s92, s2, 3\ns_add_u32 s92, s92, s{sW}\ns_lshl_b32 s92, s92, 6\ns_add_u32 s92, s92, {WS_S}\nv_mov_b32 v2, s92")
    for i in range(1, 14):
        a(f"s_sub_u32 s93, s{60+2*i}, {0 if opt.get('abs') else 's60'}\nv_mov_b32 v3, s93\nbuffer_store_dword v3, v2, {WS}, 0 offen offset:{4*i}")
    a(f"v_mov_b32 v3, s88\nbuffer_store_dword v3, v2, {WS}, 0 offen offset:56")
    a(f"v_mov_b32 v3, s90\nbuffer_store_dword v3, v2, {WS}, 0 offen offset:60")

def prologue(a, lab, opt):
    a(f"s_cmp_ge_u32 s2, 256\ns_cbranch_scc1 {lab}_end")
    a("s_and_b32 s29, s2, 7\ns_lshr_b32 s30, s2, 3")
    a(f"s_lshr_b32 s{sP}, s29, 2\ns_mul_i32 s31, s{sP}, 24")
    a("s_load_dwordx4 s[4:7], s[0:1], s31\ns_load_dwordx2 s[36:37], s[0:1], 64\ns_add_u32 s31, s31, 16")
    a("s_load_dwordx2 s[32:33], s[0:1], s31\ns_load_dwordx2 s[34:35], s[0:1], 48")
    a("v_lshrrev_b32 v1, 6, v0\ns_and_b32 s29, s29, 3\ns_lshl_b32 s29, s29, 2")
    a(f"v_readfirstlane_b32 s{sW}, v1")
    if opt.get("map", 1) == 0:
        a(f"s_and_b32 s{sRB}, s30, 7\ns_lshr_b32 s30, s30, 3\ns_add_u32 s{sHP}, s29, s30")
    else:
        a(f"s_and_b32 s{sHP}, s30, 15\ns_lshr_b32 s30, s30, 4\ns_lshr_b32 s29, s29, 1\ns_add_u32 s{sRB}, s29, s30")
    a("v_and_b32 v0, 63, v0")
    a(f"s_lshr_b32 s{sHD}, s{sW}, 2\ns_and_b32 s{sG}, s{sW}, 3")

def early_constants(a, opt):
    t = vT
    a(f"v_and_b32 {vr(t)}, 0x23, v0\nv_and_b32 {vr(t+1)}, 12, v0\nv_lshl_or_b32 {vr(t)}, {vr(t+1)}, 1, {vr(t)}")
    a(f"v_and_b32 {vr(t+1)}, 16, v0\nv_lshrrev_b32 {vr(t+1)}, 2, {vr(t+1)}\nv_or_b32 {vr(t)}, {vr(t)}, {vr(t+1)}\nv_lshlrev_b32 {vr(vKp)}, 4, {vr(t)}")
    a(f"v_lshrrev_b32 {vr(t+1)}, 4, v0\nv_lshlrev_b32 {vr(t+1)}, 9, {vr(t+1)}\nv_and_b32 {vr(t+2)}, 15, v0\nv_lshl_add_u32 {vr(t+1)}, {vr(t+2)}, 4, {vr(t+1)}")
    a(f"s_lshl_b32 s30, s{sHD}, 8\ns_lshl_b32 s31, s{sT0}, 11\ns_add_u32 s30, s30, s31\nv_add_u32 {vr(vVa)}, s30, {vr(t+1)}")
    a(f"s_lshl_b32 s30, s{sT0}, 10\ns_add_u32 s{sKS}, s30, s{sKB}")
    a(f"s_lshl_b32 s30, s{sHD}, 13\ns_lshl_b32 s31, s{sG}, 11\ns_add_u32 s30, s30, s31\ns_add_u32 s30, s30, {LDS_K}\nv_add_u32 {vr(vKw)}, s30, {vr(vKp)}")
    a(f"v_mov_b32 {vr(IDX)}, 0xdddddddd\nv_lshlrev_b32 {vr(vK)}, 4, v0")
    a(f"v_and_b32 {vr(t)}, 27, v0\nv_cmp_eq_u32 vcc, 16, {vr(t)}\nv_mov_b32 {vr(t+1)}, 0x3f803f80\nv_mov_b32 {vr(t+2)}, 0")
    a(f"v_cndmask_b32 {vr(VR)}, {vr(t+2)}, {vr(t+1)}, vcc\nv_cndmask_b32 {vr(VR+1)}, {vr(t+2)}, {vr(t+1)}, vcc")
    for i in range(2, 16, 2): a(f"v_pk_mov_b32 {vr(VR+i,2)}, {vr(VR,2)}, {vr(VR,2)} op_sel:[0,1]")
    a(f"v_mov_b32 {vr(OA)}, 0\nv_mov_b32 {vr(OA+1)}, 0")
    for i in range(2, 32, 2): a(f"v_pk_mov_b32 {vr(OA+i,2)}, {vr(OA,2)}, {vr(OA,2)} op_sel:[0,1]")
    for i in range(8, 16, 2): a(f"v_pk_mov_b32 {vr(SY+i,2)}, {vr(OA,2)}, {vr(OA,2)} op_sel:[0,1]")
    a(f"v_lshrrev_b32 {vr(t+3)}, 5, v0\nv_and_b32 {vr(t+1)}, 15, v0\nv_lshlrev_b32 {vr(t+1)}, 4, {vr(t+1)}\nv_lshl_add_u32 {vr(t)}, {vr(t+3)}, 9, {vr(t+1)}")
    a(f"s_lshl_b32 s29, s{sHD}, 8\nv_add_u32 {vr(vV)}, s29, {vr(t)}")
    a(f"s_lshl_b32 s29, s{sRB}, 14\nv_add_u32 {vr(vVb)}, s29, {vr(vV)}")
    a(f"s_lshl_b32 s29, s{sHD}, 13\ns_add_u32 s29, s29, {LDS_K}\nv_add_u32 {vr(vKl)}, s29, {vr(vK)}")
    a(f"v_and_b32 {vr(vFl)}, 15, v0\nv_lshlrev_b32 {vr(vFl)}, 7, {vr(vFl)}")
    a(f"v_lshl_add_u32 {vr(vOs)}, {vr(t+3)}, 8, {vr(t+1)}\nv_and_b32 {vr(t)}, 16, v0\nv_lshl_add_u32 {vr(vOs)}, {vr(t)}, 6, {vr(vOs)}")
    a(f"s_lshl_b32 s30, s{sP}, 6\ns_add_u32 s30, s30, s{sT0}\ns_lshl_b32 s30, s30, 15\ns_lshl_b32 s29, s{sHP}, 11\ns_add_u32 s30, s30, s29")
    a(f"s_lshl_b32 s29, s{sHD}, 9\ns_add_u32 s30, s30, s29\ns_add_u32 s{sOA}, s30, {WS_O}\ns_add_u32 s{sOB}, s{sOA}, 32768")
    a(f"v_bfe_u32 {vr(t)}, v0, 4, 1\nv_lshlrev_b32 {vr(t+1)}, 1, {vr(t)}\nv_xor_b32 {vr(t+1)}, {vr(t+1)}, v0\nv_and_b32 {vr(t+1)}, 3, {vr(t+1)}\nv_lshlrev_b32 {vr(t+1)}, 4, {vr(t+1)}")
    a(f"v_lshrrev_b32 {vr(t+2)}, 2, v0\nv_lshl_add_u32 {vr(vWs)}, {vr(t+2)}, 10, {vr(t+1)}")
    a(f"s_and_b32 s29, s{sHP}, 1\ns_lshl_b32 s29, s29, 9\ns_lshl_b32 s30, s{sW}, 6\ns_add_u32 s{sWB}, s29, s30")
    a(f"s_lshl_b32 s{sST}, s{sW}, 12\ns_add_u32 s{sST}, s{sST}, {LDS_ST}")
    a(f"v_lshlrev_b32 {vr(t+1)}, 10, {vr(t+3)}\nv_mul_u32_u24 {vr(t)}, 288, {vr(t)}\nv_add3_u32 {vr(t+1)}, {vr(t+1)}, {vr(t)}, s{sST}")
    a(f"v_bfe_u32 {vr(t)}, v0, 2, 2\nv_lshl_add_u32 {vr(t+1)}, {vr(t)}, 6, {vr(t+1)}\nv_and_b32 {vr(t)}, 3, v0\nv_lshl_add_u32 {vr(vWr)}, {vr(t)}, 3, {vr(t+1)}\nv_xor_b32 {vr(vWr+1)}, 32, {vr(vWr)}")
    a(f"s_lshl_b32 s{sTO}, s{sRB}, 13\ns_add_u32 s{sTO}, s{sTO}, 4096")
    emit(a, adv())
    a(f"v_mov_b32 {vr(vCn)}, {LDS_C}\ns_cmp_lg_u32 s{sW}, 0\ns_cbranch_scc1 early_done\nds_write_b32 {vr(vCn)}, {vr(OA)}\nearly_done:")
    for i in range(4): a(f"v_mov_b32 {vr(KR+i)}, -1")

def phase1(a, opt):
    t = vT
    vm = VM()
    a(f"s_lshl_b32 s29, s{sRB}, 8\ns_lshl_b32 s30, s{sW}, 5\ns_add_u32 s29, s29, s30\ns_lshl_b32 s29, s29, 10")
    a(f"v_lshrrev_b32 {vr(t)}, 4, v0\nv_and_b32 {vr(t+1)}, 7, v0\nv_xor_b32 {vr(t)}, {vr(t)}, {vr(t+1)}\nv_lshlrev_b32 {vr(t)}, 4, {vr(t)}")
    a(f"v_lshrrev_b32 {vr(t+1)}, 3, v0\nv_lshl_add_u32 {vr(t+1)}, {vr(t+1)}, 10, s29")
    a(f"v_xor_b32 {vr(t+2)}, 64, {vr(t)}")
    a(f"v_add_u32 {vr(vXo)}, {vr(t+1)}, {vr(t)}")
    a(f"v_add_u32 {vr(vXo+1)}, {vr(t+1)}, {vr(t+2)}\nv_add_u32 {vr(vXo+1)}, 7168, {vr(vXo+1)}")
    a(f"v_add_u32 {vr(vXo+2)}, 14336, {vr(vXo)}\nv_add_u32 {vr(vXo+3)}, 14336, {vr(vXo+1)}")
    if opt.get("map", 1) == 0:
        a(f"s_add_u32 s40, s{sHP}, s{sRB}\ns_lshl_b32 s40, s40, 1")
    else:
        a(f"s_lshr_b32 s40, s{sHP}, 1\ns_add_u32 s40, s40, s{sRB}\ns_lshl_b32 s40, s40, 1\ns_and_b32 s41, s{sHP}, 1\ns_add_u32 s40, s40, s41\ns_lshl_b32 s40, s40, 1")
        if opt.get("odd"): a(f"s_lshr_b32 s41, s{sHP}, {opt['odd']}\ns_and_b32 s41, s41, 1\ns_add_u32 s40, s40, s41")
    fl = opt.get("flip", 0)
    if fl:
        a(f"s_lshr_b32 s29, s{sHP}, {1 + fl}\ns_and_b32 s29, s29, 1\ns_sub_u32 s{sV0}, s40, s29\ns_add_u32 s40, s40, s29")
    kreg = lambda c: (sV0 if (fl and c & 1) else 40)
    a(f"s_lshl_b32 s42, s{sW}, 12\ns_mul_i32 s43, s{sW}, 1536\ns_add_u32 s43, s43, {LDS_W}\ns_mov_b32 s46, -1\ns_mov_b32 s47, 0")
    def wsetup():
        a(f"s_mul_i32 s29, s{sW}, 96\ns_lshl_b32 s30, s{sHP}, 6")
        for i in range(2):
            d = vWo + i
            a(f"v_add_u32 {vr(t)}, s29, v0")
            if i: a(f"v_add_u32 {vr(t)}, 64, {vr(t)}")
            a(f"v_mul_u32_u24 {vr(t+1)}, 1366, {vr(t)}\nv_lshrrev_b32 {vr(t+1)}, 16, {vr(t+1)}")
            a(f"v_mul_u32_u24 {vr(t+2)}, 48, {vr(t+1)}\nv_sub_u32 {vr(t+2)}, {vr(t)}, {vr(t+2)}")
            a(f"v_bfe_u32 {vr(t+3)}, {vr(t+2)}, 2, 2\nv_lshl_add_u32 {vr(t+3)}, {vr(t+1)}, 2, {vr(t+3)}")
            a(f"v_mul_u32_u24 {vr(d)}, 3072, {vr(t+3)}")
            a(f"v_lshrrev_b32 {vr(t+3)}, 4, {vr(t+2)}\nv_lshl_add_u32 {vr(d)}, {vr(t+3)}, 10, {vr(d)}")
            a(f"v_and_b32 {vr(t+1)}, 2, {vr(t+1)}\nv_xor_b32 {vr(t+2)}, {vr(t+2)}, {vr(t+1)}\nv_and_b32 {vr(t+2)}, 3, {vr(t+2)}")
            a(f"v_lshl_add_u32 {vr(d)}, {vr(t+2)}, 4, {vr(d)}")
            if i: a(f"s_sub_u32 s30, s30, 1024")
            a(f"v_add_u32 {vr(d)}, s30, {vr(d)}")
    order = opt.get("order", 0)
    if order == 0: wsetup()
    a("s_waitcnt lgkmcnt(0)")
    emit(a, st_(opt, 1))
    srd(a, SRD_X, 4, 0x200000); srd(a, SRD_W, 6, 0x180000)
    def dmax(c):
        L = [f"s_add_u32 s41, s{kreg(c)}, {c}\ns_and_b32 s41, s41, 7\ns_add_u32 m0, s42, {(c%3)*32768}\ns_lshl_b32 s44, s41, 7"]
        for i in range(4): L.append(f"buffer_load_dwordx4 {vr(vXo+i)}, {XX}, s44 offen offset:{1024*i} lds")
        vm.issue(f"x{c}", 4)
        return L
    def dmaw(c):
        L = [f"s_add_u32 s41, s{kreg(c)}, {c}\ns_and_b32 s41, s41, 7\ns_add_u32 m0, s43, {(c%3)*12288}\ns_mul_i32 s45, s41, 196608\nbuffer_load_dwordx4 {vr(vWo)}, {WW}, s45 offen lds",
             f"s_mov_b64 exec, s[46:47]\nbuffer_load_dwordx4 {vr(vWo+1)}, {WW}, s45 offen offset:1024 lds\ns_mov_b64 exec, -1"]
        vm.issue(f"w{c}", 2)
        return L
    def landed(c):
        tags = [x for x in (f"x{c}", f"w{c}") if x in vm.ops]
        if not tags: return []
        return vm.wait(max(tags, key=lambda x: max(i for i, y in enumerate(vm.ops) if y == x)))
    if order == 0:
        emit(a, dmax(0) + dmaw(0) + dmax(1) + dmaw(1))
    else:
        emit(a, dmax(0)); wsetup()
        if order == 2: emit(a, dmaw(0))
    srd(a, SRD_WS, 36, WS_SIZE); srd(a, SRD_O, 34, 0x400000)
    a(f"s_lshl_b32 s30, s{sP}, 4\ns_add_u32 s30, s30, s{sHP}\ns_lshl_b32 s31, s30, 17")
    a(f"s_lshl_b32 s{sFL}, s30, 11\ns_add_u32 s{sFL}, s{sFL}, {WS_F}\ns_add_u32 s29, s{sFL}, 1024\ns_load_dword s{sNON}, s[36:37], s29")
    a(f"s_lshl_b32 s29, s{sP}, 3\ns_add_u32 s29, s29, s{sRB}\ns_lshl_b32 s29, s29, 12\ns_add_u32 s{sFL2}, s29, {WS_F + 0x10000}\ns_add_u32 s29, s{sFL2}, 2048\ns_load_dword s{sNON2}, s[36:37], s29")
    a(f"s_lshl_b32 s{sKB}, s{sHD}, 16\ns_add_u32 s{sKB}, s{sKB}, s31\ns_add_u32 s{sVB}, s31, {WS_V}")
    a(f"s_lshl_b32 s{sT0}, s{sRB}, 3\ns_lshl_b32 s29, s{sG}, 1\ns_add_u32 s{sT0}, s{sT0}, s29")
    a(f"v_bfe_u32 {vr(t)}, v0, 1, 3\nv_lshrrev_b32 {vr(t+1)}, 4, v0\nv_xor_b32 {vr(t)}, {vr(t)}, {vr(t+1)}\nv_lshlrev_b32 {vr(t)}, 4, {vr(t)}")
    a(f"v_and_b32 {vr(t+2)}, 15, v0\nv_lshl_add_u32 {vr(t)}, {vr(t+2)}, 7, {vr(t)}")
    a(f"s_lshl_b32 s29, s{sG}, 13\nv_add_u32 {vr(vXa)}, s29, {vr(t)}\nv_xor_b32 {vr(vXa+1)}, 64, {vr(vXa)}")
    a(f"v_add_u32 {vr(vXa+2)}, 0x10000, {vr(vXa)}\nv_add_u32 {vr(vXa+3)}, 0x10000, {vr(vXa+1)}")
    a(f"v_mul_u32_u24 {vr(t)}, 1536, {vr(t+1)}\nv_bfe_u32 {vr(t+2)}, v0, 2, 2\nv_lshl_add_u32 {vr(t)}, {vr(t+2)}, 6, {vr(t)}")
    a(f"v_and_b32 {vr(t+2)}, 3, v0\nv_lshl_add_u32 {vr(t)}, {vr(t+2)}, 3, {vr(t)}")
    a(f"v_xor_b32 {vr(t+1)}, s{sHD}, {vr(t+1)}\nv_and_b32 {vr(t+1)}, 1, {vr(t+1)}\nv_lshl_add_u32 {vr(t)}, {vr(t+1)}, 5, {vr(t)}")
    a(f"v_add_u32 {vr(vWa)}, {LDS_W}, {vr(t)}")
    if opt.get("warm"):
        a(f"s_lshr_b32 s29, s2, 3\ns_cmp_lg_u32 s29, 0\ns_cbranch_scc1 warm_done\ns_getpc_b64 s[58:59]\nwarm_pc:")
        a(f"s_lshl_b32 s29, s{sW}, 12\nv_lshlrev_b32 {vr(t)}, 6, v0\nv_add_u32 {vr(t)}, s29, {vr(t)}\nv_min_u32 {vr(t)}, code_end-warm_pc-4, {vr(t)}")
        a(f"global_load_dword {vr(t+7)}, {vr(t)}, s[58:59]\nwarm_done:")
    early_constants(a, opt)
    if opt.get("sentc", 6) == -1:
        emit(a, [f"buffer_store_dwordx4 {vr(KR,4)}, {vr(vOs)}, {WS}, s{so} offen sc1" for so in (sOA, sOB)]); vm.issue("S", 2)
    if order == 1: emit(a, dmaw(0) + dmax(1) + dmaw(1))
    if order == 2: emit(a, dmax(1) + dmaw(1))
    def reads(c, s, fs):
        if opt.get("nord"): return ["s_nop 0"] * 10
        st = c % 3
        F = F1 + 28 * fs
        xa = vXa + s + (2 if st == 2 else 0)
        xi = 32768 if st == 1 else 0
        wi = st * 12288 + s * 6144
        W = lambda seg, u: f"ds_read_b64_tr_b16 {vr(F+16+4*seg+2*u,2)}, {vr(vWa)} offset:{wi + u*768 + seg*256}"
        X = lambda ts: f"ds_read_b128 {vr(F+4*ts,4)}, {vr(xa)} offset:{xi + ts*2048}"
        return [W(0, 0), W(0, 1), X(0), W(1, 0), W(1, 1), X(1), W(2, 0), W(2, 1), X(2), X(3)]
    def mfmas(fs, first, kv_first=False):
        if opt.get("nomf"): return ["s_nop 0"] * 12
        F = F1 + 28 * fs
        Q = [m16(aQ+4*ts, F+16, F+4*ts, first) for ts in range(4)]
        K = [m16(aK+4*ts, F+20, F+4*ts, first) for ts in range(4)]
        V = [m16(aV+4*ts, F+4*ts, F+24, first) for ts in range(4)]
        if kv_first: return V + K + Q
        return [x for ts in range(4) for x in (Q[ts], K[ts], V[ts])]
    emit(a, landed(0)); a("s_waitcnt lgkmcnt(0)\ns_barrier")
    emit(a, st_(opt, 4))
    def p1_loop(dpos, vm_in):
        vm.ops = list(vm_in)
        def dma_for(c):
            D = (dmax(c + 2) + dmaw(c + 2)) if c + 2 < 8 else []
            if opt.get("nodma"): D = []; vm.ops = [x for x in vm.ops if x[1:] != str(c + 2)]
            if c == opt.get("sentc", 6):
                D = D + [f"buffer_store_dwordx4 {vr(KR,4)}, {vr(vOs)}, {WS}, s{so} offen sc1" for so in (sOA, sOB)]; vm.issue("S", 2)
            return D
        def spread(M, parts):
            slots = [[] for _ in M]
            for f, l, items in parts:
                k = 0
                for i in range(f, l + 1):
                    n = -(-(len(items) - k) // (l + 1 - i))
                    slots[i] += items[k:k+n]; k += n
            for m, sl in zip(M, slots):
                a(m); emit(a, sl)
        emit(a, reads(0, 0, 0))
        Dn = dma_for(0) if dpos == 1 else None
        if dpos == 1: emit(a, Dn)
        for c in range(8):
            M = mfmas(0, c == 0); X = reads(c, 1, 1)
            a("s_waitcnt lgkmcnt(0)")
            if dpos == 0: spread(M, [(0, 4, X), (5, 11, dma_for(c))])
            elif dpos == 2: spread(M, [(0, 4, dma_for(c)), (4, 8, X)])
            elif dpos == 3: spread(M, [(0, 6, dma_for(c)), (0, 9, X)])
            elif dpos == 4: spread(M, [(0, 4, X), (8, 11, dma_for(c))])
            elif dpos == 5: Dn = dma_for(c); spread(M, [(0, 4, X)])
            else: spread(M, [(0, 4, X)])
            M = mfmas(1, False, c == 7)
            a("s_waitcnt lgkmcnt(0)")
            if c < 7:
                nb = opt.get("nb", 3)
                if dpos == 5: nb = 6; spread(M[:nb], [(0, nb - 1, Dn)])
                else: emit(a, M[:nb])
                emit(a, landed(c + 1)); a("s_barrier")
                X = reads(c + 1, 0, 0)
                if dpos == 1: spread(M[nb:], [(0, 4, X), (2, 11 - nb, dma_for(c + 1))])
                else: spread(M[nb:], [(0, min(4, 11 - nb), X)])
            else:
                a("s_barrier")
                emit(a, M)

    dp = opt.get("dpos", 0)
    start = list(vm.ops)
    if isinstance(dp, int):
        p1_loop(dp, start)
    else:
        a(f"s_cmp_lg_u32 s{sHD}, 0\ns_cbranch_scc1 p1_hd1")
        n0 = len(a.lines)
        p1_loop(dp[0], start)
        a("s_branch p1_done\np1_hd1:")
        p1_loop(dp[1], start)
        a("p1_done:")
    emit(a, st_(opt, 5))
    KA, VA = 20, 28
    a(f"s_mov_b32 s29, {f32hex(QSCALE)}")
    a(lcg(sNON)); a(lcg(sNON2))
    a(f"s_getreg_b32 s{sXCC}, hwreg(HW_REG_XCC_ID, 0, 4)")
    a("s_mov_b32 s46, 0xffff\ns_mov_b32 s47, 0xffff")
    srd(a, SRD_W, 32, 0x80000)
    def qpart():
        for i in range(16): a(f"v_mul_f32 {vr(aQ+i)}, s29, {vr(aQ+i)}")
        for i in range(8): a(f"v_cvt_pk_bf16_f32 {vr(QA+i)}, {vr(aQ+2*i)}, {vr(aQ+2*i+1)}")
        a(f"v_mov_b32 {vr(vNon)}, s{sNON}\ns_nop 0")
        for Q in (QA, QB): a(f"v_permlane16_swap_b32 {vr(Q)}, {vr(Q+2)}\nv_permlane16_swap_b32 {vr(Q+1)}, {vr(Q+3)}")
    for ts in range(4):
        for i in range(2): a(f"v_cvt_pk_bf16_f32 {vr(VA+2*ts+i)}, {vr(aV+4*ts+2*i)}, {vr(aV+4*ts+2*i+1)}")
    for i in range(2): a(f"buffer_store_dwordx4 {vr(VA+4*i,4)}, {vr(vVa)}, {WS}, s{sVB} offen offset:{2048*i} sc1")
    for ts in range(4):
        for i in range(2): a(f"v_cvt_pk_bf16_f32 {vr(KA+2*ts+i)}, {vr(aK+4*ts+2*i)}, {vr(aK+4*ts+2*i+1)}")
    for i in range(2): a(f"ds_write_b128 {vr(vVa)}, {vr(VA+4*i,4)} offset:{2048*i}")
    for K in (KA, KA + 4): a(f"v_permlane16_swap_b32 {vr(K)}, {vr(K+2)}\nv_permlane16_swap_b32 {vr(K+1)}, {vr(K+3)}")
    for i in range(2): a(f"ds_write_b128 {vr(vKw)}, {vr(KA+4*i,4)} offset:{1024*i}")
    for i in range(2): a(f"buffer_store_dwordx4 {vr(KA+4*i,4)}, {vr(vKp)}, {WS}, s{sKS} offen offset:{1024*i} sc1")
    if opt.get("sentc", 6) == 8:
        emit(a, [f"buffer_store_dwordx4 {vr(KR,4)}, {vr(vOs)}, {WS}, s{so} offen sc1" for so in (sOA, sOB)])
    if not opt.get("qlate", 0): qpart()
    a("s_waitcnt lgkmcnt(0)\ns_barrier")
    emit(a, st_(opt, 6))
    emit(a, [f"ds_read_b128 {vr(KO,4)}, {vr(vKl)}"] + vread(VR, 0))
    if opt.get("qlate", 0): qpart()

def smf(o, v, b): return f"v_smfmac_f32_32x32x32_bf16 {vr(o,16)}, {vr(v,4)}, {vr(b,8)}, {vr(IDX)}"
CSTAND = "0.5"
def qk(d, k, q, c=None):
    c = CSTAND if c is None else c
    return f"v_mfma_f32_32x32x16_bf16 {vr(d,16)}, {vr(k,4)}, {vr(q,4)}, {c}"

def step(X, Y, Oc, Op, Kn, Qn, Va, Vprev, extra, pos):
    L = []
    for i in range(16):
        L += extra.get(i, [])
        if i == pos[0]: L.append(smf(Op, Vprev, Y + 8))
        if i == pos[1]: L.append(qk(Y, Kn, Qn))
        if i == pos[2]: L.append(smf(Oc, Va, X))
        L.append(f"v_exp_f32 {vr(X+i)}, {vr(X+i)}")
    return L
def add(d, k, items): d.setdefault(k, []); d[k] += items
def vread(V, off):
    return ["s_mov_b64 exec, s[46:47]", f"ds_read_b128 {vr(V,4)}, {vr(vVb)} offset:{off}", f"ds_read_b128 {vr(V+4,4)}, {vr(vVb)} offset:{off+1024}", "s_mov_b64 exec, -1"]
def adv():
    return [f"s_add_u32 s{sTO}, s{sTO}, 4096", f"s_and_b32 s{sTO}, s{sTO}, 0xffff", f"s_add_u32 s{sKO}, s{sTO}, s{sKB}", f"s_lshl_b32 s{sVO}, s{sTO}, 1"]

def body(opt, t0, vm, hooks=None, last=False):
    pos = opt.get("pos", (2, 5, 10)); vpos = opt.get("vpos", 13); kpos = opt.get("kpos", 13)
    hooks = hooks or {}
    L = []
    for j in range(4):
        K0 = KR + 4 * j; K1 = KR + 4 * ((j + 1) & 3)
        V0 = VR + 8 * (j & 1); V1 = VR + 8 * ((j + 1) & 1)
        ex = {'A': {}, 'B': {}}
        fin = last and j == 3
        for ph in 'AB':
            for i in range(16):
                if ph == 'A' and i == vpos and not fin:
                    add(ex['A'], i, ([f"v_add_u32 {vr(vVb)}, s{sVO}, {vr(vV)}"] if j == 3 else []) + vread(V1, ((j + 1) & 3) * 2048))
                if ph == 'A' and i == pos[2]: add(ex['A'], i, ["s_waitcnt lgkmcnt(0)"])
                if ph == 'B' and i == pos[1]: add(ex['B'], i, vm.wait(f"K{t0+j+1}"))
                if ph == 'B' and i == kpos and not last:
                    add(ex['B'], i, [f"buffer_load_dwordx4 {vr(K0,4)}, {vr(vK)}, {WS}, s{sKO} offen offset:{1024*j} {'sc1' if t0 < opt.get('kplain', 99) else opt.get('kflag', '')}"]); vm.issue(f"K{t0+j+4}")
                if ph == 'B' and i == max(14, kpos) and j == 3 and not last: add(ex['B'], i, adv())
                if (j, ph, i) in hooks: add(ex[ph], i, hooks[(j, ph, i)](vm))
        L += step(SX, SY, OA, OB, K0, QB, V0, V1 + 4, ex['A'], pos)
        B = step(SY, SX, OB, OA, K1, QA, V0, V0 + 4, ex['B'], pos)
        if fin: B = [x for x in B if not x.startswith(qk(SX, K1, QA))]
        L += B
    return L

def spin(lab, issue, test, sl=1):
    return [f"s_cbranch_scc1 {lab}_ok", f"s_mov_b32 s{sSPIN}, 0", f"{lab}_spin:", f"s_add_u32 s{sSPIN}, s{sSPIN}, 1", f"s_cmp_gt_u32 s{sSPIN}, 0x100000",
            f"s_cbranch_scc1 {lab}_ok", f"s_sleep {sl}"] + issue + ["s_waitcnt vmcnt(0)"] + test + [f"s_cbranch_scc0 {lab}_spin", f"{lab}_ok:"]
def ptest(s, r): return [f"v_cmp_eq_u32 vcc, s{s}, {vr(r)}", "s_nop 1", "s_cmp_eq_u64 vcc, -1"]
def vdma(c, vm):
    L = [f"s_add_u32 s30, s{sRB}, {c}", "s_and_b32 s30, s30, 7", "s_lshl_b32 s30, s30, 14", f"s_add_u32 m0, s30, s{sV0}", f"s_add_u32 s30, s30, s{sV1}"]
    for i in range(2): L.append(f"buffer_load_dwordx4 {vr(vK)}, {WS}, s30 offen offset:{1024*i} sc1 lds")
    vm.issue(f"V{c}", 2)
    return L

def only(hd, lab, L):
    return [f"s_cmp_lg_u32 s{sHD}, {hd}", f"s_cbranch_scc1 {lab}"] + L + [f"{lab}:"]

def own_chunk(opt, vm):
    pos = opt.get("pos", (2, 5, 10)); vpos = opt.get("vpos", 13)
    sy = opt.get("sync", ((2, 4, 5), (0, 4, 5)))
    up, down = opt.get("ownprio", (0, 5))
    out = []
    poll1 = [f"buffer_load_dword {vr(vT)}, {vr(vT+1)}, {WS}, s{sFL} offen sc1"]
    def publish(n):
        return [f"v_mov_b32 {vr(vT+2)}, 1", "s_waitcnt vmcnt(0)", "s_mov_b64 exec, 1", f"ds_add_rtn_u32 {vr(vT+2)}, {vr(vCn)}, {vr(vT+2)}",
                f"s_lshl_b32 s29, s{sRB}, 7", f"v_mov_b32 {vr(vT+3)}, s29", f"s_lshl_b32 s29, s{sHP}, 7", f"v_mov_b32 {vr(vT+5)}, s29", f"v_mov_b32 {vr(vT+6)}, s{sNON2}", f"s_xor_b32 s29, s{sNON2}, s{sXCC}", f"v_mov_b32 {vr(vT+7)}, s29",
                "s_waitcnt lgkmcnt(0)", f"v_cmp_eq_u32 vcc, 7, {vr(vT+2)}", "s_and_saveexec_b64 s[58:59], vcc", f"s_cbranch_execz own_notlast{n}",
                f"buffer_store_dword {vr(vNon)}, {vr(vT+3)}, {WS}, s{sFL} offen sc1", f"buffer_store_dwordx2 {vr(vT+6,2)}, {vr(vT+5)}, {WS}, s{sFL2} offen sc1",
                f"own_notlast{n}:", "s_mov_b64 exec, -1"] + st_(opt, 7)
    def fetch(hd):
        L = ["s_waitcnt vmcnt(0)"] + ptest(sNON, vT) + spin(f"own{hd}", poll1, ptest(sNON, vT)) + st_(opt, 8)
        L += [f"buffer_load_dwordx4 {vr(KR+4*i,4)}, {vr(vK)}, {WS}, s{sKO} offen offset:{1024*i} sc1" for i in range(4)]
        if hd == 0:
            L += [f"s_add_u32 s30, s{sRB}, 1", "s_and_b32 s30, s30, 7", "s_lshl_b32 s30, s30, 14", f"s_lshl_b32 s29, s{sG}, 12", "s_add_u32 s30, s30, s29", "s_mov_b32 m0, s30", f"s_add_u32 s30, s30, s{sVB}"]
            L += [f"buffer_load_dwordx4 {vr(vK)}, {WS}, s30 offen offset:{1024*i} sc1 lds" for i in range(4)]
        return L
    for j in range(8):
        K0 = KO + 4 * (j & 1); K1 = (KO + 4 * ((j + 1) & 1)) if j < 7 else KR
        V0 = VR + 8 * (j & 1); V1 = VR + 8 * ((j + 1) & 1)
        exA = {}; exB = {}
        pre = []
        for hd in (0, 1):
            tf, tp, tc = sy[hd]
            L = []
            if j == tf: L += publish(hd)
            if j == tp: L += [f"s_add_u32 s29, s{sRB}, 1", "s_and_b32 s29, s29, 7", "s_lshl_b32 s29, s29, 7", f"v_mov_b32 {vr(vT+1)}, s29"] + poll1
            if j == tc: L += fetch(hd)
            if hd == 1 and j == up and up != down: L += ["s_setprio 1"]
            if L: pre += only(hd, f"own_skip{j}_{hd}", L)
        if j == down and up != down: pre += ["s_setprio 0"]
        if j == 7:
            pre += ["s_waitcnt vmcnt(0)", "s_barrier"] + st_(opt, 9) + [f"v_add_u32 {vr(vVb)}, s{sVO}, {vr(vV)}", f"s_lshl_b32 s{sV0}, s{sW}, 11", f"s_add_u32 s{sV1}, s{sVB}, s{sV0}"]
        if opt.get("tilest"):
            i = [1, 2, 3, 4, 5, 11, 12, 13][j]
            pre = [f"s_memtime s[{60+2*i}:{61+2*i}]"] + pre
        add(exA, 0, pre)
        rd = []
        if j < 7: rd += [f"ds_read_b128 {vr(K1,4)}, {vr(vKl)} offset:{1024*(j+1)}"]
        vp = min(vpos, 8) if j < 7 else vpos
        add(exA, vp, rd + vread(V1, (j + 1) * 2048 if j < 7 else 0))
        if j == 0 or j == 7: add(exA, pos[2], ["s_waitcnt lgkmcnt(3)" if (j == 0 and vp < pos[2]) else "s_waitcnt lgkmcnt(0)"])
        if j < 7: add(exB, pos[1], ["s_waitcnt lgkmcnt(0)"])
        if j == 7: add(exB, 14, adv())
        out += step(SX, SY, OA, OB, K0, QB, V0, V1 + 4, exA, pos)
        out += step(SY, SX, OB, OA, K1, QA, V0, V0 + 4, exB, pos)
    vm.ops = []
    return out

def wo_dma(r, vm):
    L = [f"s_mov_b32 m0, s{sST}"]
    for i in range(4):
        L += [f"s_add_u32 s41, s{sWB}, {r*65536 + i*15360}", f"buffer_load_dwordx4 {vr(vWs)}, {WW}, s41 offen offset:{1024*i} lds"]
    vm.issue(f"W{r}", 4)
    return L
def wo_read(r, sg):
    return [f"ds_read_b64_tr_b16 {vr(WO + ((2*r+sg)*2+jt)*4 + 2*u, 2)}, {vr(vWr+jt)} offset:{sg*2048 + u*512}" for jt in range(2) for u in range(2)]

def phase2(a, opt):
    t = vT
    L = ["s_waitcnt lgkmcnt(2)", qk(SX, KO, QA), "s_nop 7", "s_nop 3"]
    vm = VM()
    L += ["; tiles 0..7: this workgroup's own keys (K from LDS); publish K/V, fetch the next block's"] + own_chunk(opt, vm) + st_(opt, 10) + ["; tiles 8..11: wait for the whole group's flags"]
    poll2 = [f"v_and_b32 {vr(vT+1)}, 0x380, {vr(vFl)}", f"buffer_load_dword {vr(vT)}, {vr(vT+1)}, {WS}, s{sFL} offen sc1"]
    def p2(vm): vm.issue("P2"); return poll2
    roll = opt.get("roll", 0)
    def stage(b):
        h = {}
        if not roll: return h
        for j in (0, 2):
            r = 2 * b + j // 2
            h[(j, 'A', 1)] = lambda vm, r=r: wo_dma(r, vm)
            h[(j + 1, 'A', 6)] = lambda vm, r=r: vm.wait(f"W{r}") + wo_read(r, 0)
            h[(j + 1, 'A', 8)] = lambda vm, r=r: wo_read(r, 1)
        return h
    assert not roll
    L += body(opt, 8, vm, {(0, 'A', 0): p2})
    L += vm.wait("P2") + ptest(sNON, vT) + spin("all", poll2[1:], ptest(sNON, vT))
    if opt.get("inv") is not None:
        L += [f"s_cmp_lg_u32 s{sW}, {opt['inv']}", "s_cbranch_scc1 att_noinv", "buffer_inv sc1", "att_noinv:"]
    L += [f"s_add_u32 s29, s{sRB}, s{sW}", "s_cmp_lg_u32 s29, 0", "s_cbranch_scc1 att_noepoch", "s_mov_b64 exec, 1", f"v_mov_b32 {vr(t+2)}, 1024",
          f"buffer_store_dword {vr(vNon)}, {vr(t+2)}, {WS}, s{sFL} offen sc1", "s_mov_b64 exec, -1", "att_noepoch:"]
    L += ["; tiles 12..15: the remaining V blocks stream into LDS"]
    L += body(opt, 12, vm, {(0, 'A', 0): lambda vm: vdma(2, vm), (1, 'A', 0): lambda vm: vdma(3, vm) + vdma(4, vm), (2, 'A', 0): lambda vm: vdma(5, vm) + vdma(6, vm),
                            (3, 'A', 0): lambda vm: vm.wait("V2") + ["s_barrier"] + vdma(7, vm)})
    L += ["; tiles 16..19: wo towards L2; partners of the o exchange have marked their slots; are they all on this die?"]
    def wo_touch(vm):
        vm.issue("T")
        mem = [f"s_lshr_b32 s29, s{sHP}, 1", "s_and_b32 s29, s29, 1", "s_lshl_b32 s29, s29, 3", f"s_add_u32 s29, s29, s{sRB}"] if opt.get("map", 1) == 0 else \
              [f"s_and_b32 s29, s{sRB}, 1", "s_lshl_b32 s29, s29, 3", f"s_lshr_b32 s30, s{sHP}, 1", "s_add_u32 s29, s29, s30"]
        return mem + ["s_lshl_b32 s29, s29, 3", f"s_add_u32 s29, s29, s{sW}", "s_lshl_b32 s29, s29, 12",
                f"s_and_b32 s30, s{sHP}, 1", "s_lshl_b32 s30, s30, 9", "s_add_u32 s29, s29, s30",
                f"v_lshrrev_b32 {vr(t+2)}, 2, v0", f"v_lshlrev_b32 {vr(t+2)}, 10, {vr(t+2)}", f"v_and_b32 {vr(t+3)}, 3, v0", f"v_lshl_add_u32 {vr(t+2)}, {vr(t+3)}, 7, {vr(t+2)}",
                "s_mov_b64 exec, 0xffff", f"buffer_load_dword {vr(t+4)}, {vr(t+2)}, {WW}, s29 offen", "s_mov_b64 exec, -1"]
    poll3 = [f"buffer_load_dwordx2 {vr(vT,2)}, {vr(vFl)}, {WS}, s{sFL2} offen sc1"]
    def p3(vm): vm.issue("P3"); return poll3
    L += body(opt, 16, vm, {(0, 'B', 14): wo_touch, (0, 'A', 0): p3})
    L += vm.wait("P3") + ptest(sNON2, vT) + spin("mrk", poll3, ptest(sNON2, vT))
    L += [f"s_xor_b32 s29, s{sNON2}, s{sXCC}"] + ptest(29, vT + 1) + [f"s_cselect_b32 s{sFAST}, 1, 0"]
    L += [f"s_add_u32 s29, s{sHP}, s{sW}", "s_cmp_lg_u32 s29, 0", "s_cbranch_scc1 att_noepoch2", "s_mov_b64 exec, 1", f"v_mov_b32 {vr(t+2)}, 2048", f"v_mov_b32 {vr(t+3)}, s{sNON2}",
          f"buffer_store_dword {vr(t+3)}, {vr(t+2)}, {WS}, s{sFL2} offen sc1", "s_mov_b64 exec, -1", "att_noepoch2:"]
    L += ["s_barrier"]
    prio = opt.get("prio", 2)
    if prio: L += [f"s_cmp_eq_u32 s{sHD}, 0", "s_cbranch_scc1 att_noprio", "s_setprio 1", "att_noprio:"]
    L += ["; tiles 20..63; wo fragments are staged through LDS into v4..v131 on the way"]
    w0 = opt.get("wo0", 0)
    for b in range(11):
        hk = {}
        r = b - w0
        if 1 <= r <= 8:
            hk[(0, 'A', 0)] = lambda vm, r=r: vm.wait(f"W{r-1}") + wo_read(r - 1, 0)
            hk[(0, 'A', 7)] = lambda vm, r=r: wo_read(r - 1, 1)
        if 0 <= r < 8:
            hk[(1, 'A', 0)] = lambda vm, r=r: wo_dma(r, vm)
        if opt.get("idle") and b == 3: hk[(2, 'A', 0)] = lambda vm: ["s_barrier", f"s_sleep {opt['idle']}", "s_barrier"]
        if prio and b == 11 - prio: hk[(0, 'B', 0)] = lambda vm: ["s_setprio 0"]
        L += body(opt, 20 + 4 * b, vm, hk, last=(b == 10))
    L += st_(opt, 11)
    L += ["s_nop 1", smf(OB, VR + 12, SY + 8)]
    assert vm.ops == [], vm.ops
    emit(a, L)
    a(f"s_mov_b32 s29, {f32hex(2.0**-60)}\ns_mov_b32 s30, {f32hex(2.0**60)}\ns_mov_b32 s31, 0x7f800000")
    a(f"v_cmp_le_f32 s[58:59], s29, {vr(OA+8)}\nv_cmp_ge_f32 vcc, s30, {vr(OA+8)}")
    a(f"v_add_f32 {vr(t)}, abs({vr(OA)}), abs({vr(OA+1)})")
    for i in range(2, 8): a(f"v_add_f32 {vr(t)}, {vr(t)}, abs({vr(OA+i)})")
    a("s_and_b64 s[58:59], s[58:59], vcc")
    a(f"v_cmp_le_f32 vcc, s29, {vr(OB+8)}")
    for i in range(8): a(f"v_add_f32 {vr(t)}, {vr(t)}, abs({vr(OB+i)})")
    a("s_and_b64 s[58:59], s[58:59], vcc")
    a(f"v_cmp_ge_f32 vcc, s30, {vr(OB+8)}\ns_nop 1\ns_and_b64 s[58:59], s[58:59], vcc")
    a(f"v_cmp_gt_f32 vcc, s31, {vr(t)}\ns_nop 1\ns_and_b64 s[58:59], s[58:59], vcc")
    a("s_cmp_eq_u64 s[58:59], -1")
    if opt.get("forcefb"): a("s_branch att_fallback")
    a("s_cbranch_scc0 att_fallback")
    a.label("att_finish")
    a(f"v_rcp_f32 {vr(t)}, {vr(OA+8)}\nv_rcp_f32 {vr(t+1)}, {vr(OB+8)}\ns_mov_b32 s29, -2")
    for n, (O, P, r, so) in enumerate(((OA, SX, t, sOA), (OB, SX + 4, t + 1, sOB))):
        for i in range(8): a(f"v_mul_f32 {vr(O+i)}, {vr(O+i)}, {vr(r)}")
        for i in range(4): a(f"v_cvt_pk_bf16_f32 {vr(P+i)}, {vr(O+2*i)}, {vr(O+2*i+1)}")
        for i in range(4): a(f"v_min_u32 {vr(P+i)}, s29, {vr(P+i)}")
        st = f"buffer_store_dwordx4 {vr(P,4)}, {vr(vOs)}, {WS}, s{so} offen"
        if opt.get("fast", 1):
            a(f"s_cmp_lg_u32 s{sFAST}, 0\ns_cbranch_scc1 att_ofast{n}\n{st} sc1\ns_branch att_odone{n}\natt_ofast{n}:\n{st} {opt.get('fastf','')}\natt_odone{n}:")
        else:
            a(st + " sc1")
    if opt.get("clean"):
        for i in range(8): a(f"v_mov_b32 {vr(OB+i)}, {vr(SX+i)}")
    emit(a, st_(opt, 12))

def fallback(a, opt):
    t = vT
    a.label("att_fallback")
    a("s_waitcnt vmcnt(0) lgkmcnt(0)\ns_setprio 0")
    for nm, Q, O in (("a", QA, OA), ("b", QB, OB)):
        a(f"v_mov_b32 {vr(t)}, 0xff800000\ns_mov_b32 s{sCNT}, 0")
        a.label("fb_max" + nm)
        a(f"s_lshl_b32 s29, s{sCNT}, 10\ns_add_u32 s29, s29, s{sKB}")
        a(f"buffer_load_dwordx4 {vr(KR,4)}, {vr(vK)}, {WS}, s29 offen sc1\ns_waitcnt vmcnt(0)")
        a(qk(SX, KR, Q, "0")); a("s_nop 7\ns_nop 7")
        for i in range(0, 16, 2): a(f"v_max3_f32 {vr(t)}, {vr(t)}, {vr(SX+i)}, {vr(SX+i+1)}")
        a(f"s_add_u32 s{sCNT}, s{sCNT}, 1\ns_cmp_lt_u32 s{sCNT}, 64\ns_cbranch_scc1 fb_max{nm}")
        a(f"v_mov_b32 {vr(t+1)}, {vr(t)}\ns_nop 1\nv_permlane32_swap_b32 {vr(t)}, {vr(t+1)}")
        for i in range(16): a(f"v_min_f32 {vr(SY+i)}, -{vr(t)}, -{vr(t+1)}")
        for i in range(16): a(f"v_mov_b32 {vr(O+i)}, 0")
        a(f"s_mov_b32 s{sCNT}, 0")
        a.label("fb_sum" + nm)
        a(f"s_lshl_b32 s29, s{sCNT}, 10\ns_add_u32 s29, s29, s{sKB}\ns_lshl_b32 s30, s{sCNT}, 11\nv_add_u32 {vr(vVb)}, s30, {vr(vV)}")
        a(f"buffer_load_dwordx4 {vr(KR,4)}, {vr(vK)}, {WS}, s29 offen sc1")
        emit(a, vread(VR, 0))
        a("s_waitcnt vmcnt(0) lgkmcnt(0)")
        a(qk(SX, KR, Q, vr(SY, 16))); a("s_nop 7\ns_nop 7")
        for i in range(16): a(f"v_exp_f32 {vr(SX+i)}, {vr(SX+i)}")
        a("s_nop 1")
        a(smf(O, VR, SX)); a(smf(O, VR + 4, SX + 8))
        a(f"s_add_u32 s{sCNT}, s{sCNT}, 1\ns_cmp_lt_u32 s{sCNT}, 64\ns_cbranch_scc1 fb_sum{nm}")
        a("s_nop 7\ns_nop 7")
    a("s_branch att_finish")

def phase3(a, opt):
    t = vT
    G, F, acc = KR, VR, OA
    a(f"s_lshr_b32 s29, s{sHP}, 1\ns_lshl_b32 s30, s{sRB}, 3\ns_add_u32 s44, s29, s30")
    a(f"s_lshl_b32 s30, s{sP}, 6\ns_add_u32 s30, s30, s44\ns_lshl_b32 s30, s30, 15\ns_lshl_b32 s31, s{sW}, 12\ns_add_u32 s30, s30, s31\ns_add_u32 s45, s30, {WS_O}")
    gather = [f"buffer_load_dwordx4 {vr(G+4*i,4)}, {vr(vK)}, {WS}, s45 offen offset:{1024*i} sc1" for i in range(4)]
    emit(a, gather)
    a(f"v_add_u32 {vr(t+2)}, s{sST}, {vr(vK)}\nv_add_u32 {vr(t+3)}, {LDS_ST}, {vr(vK)}")
    a(f"v_and_b32 {vr(t+4)}, 15, v0\nv_lshlrev_b32 {vr(t+4)}, 11, {vr(t+4)}\nv_bfe_u32 {vr(t+1)}, v0, 4, 1\nv_lshl_add_u32 {vr(t+4)}, {vr(t+1)}, 5, {vr(t+4)}")
    a(f"v_lshrrev_b32 {vr(t+1)}, 5, v0\nv_lshl_add_u32 {vr(t+4)}, {vr(t+1)}, 4, {vr(t+4)}")
    a(f"s_lshl_b32 s29, s44, 16\ns_lshl_b32 s30, s{sP}, 10\ns_add_u32 s29, s29, s30\ns_add_u32 s52, s29, s{sWB}\ns_add_u32 s53, s52, 32768")
    test = [f"v_max3_u32 {vr(t)}, {vr(G)}, {vr(G+1)}, {vr(G+2)}"] + [f"v_max3_u32 {vr(t)}, {vr(t)}, {vr(G+i)}, {vr(G+i+1)}" for i in range(3, 15, 2)]
    test += [f"v_max_u32 {vr(t)}, {vr(t)}, {vr(G+15)}", f"v_cmp_ne_u32 vcc, -1, {vr(t)}", "s_nop 1", "s_cmp_eq_u64 vcc, -1"]
    emit(a, ["s_waitcnt vmcnt(0)"] + st_(opt, 13) + test + spin("prj", gather, test, opt.get("psleep", 2)))
    emit(a, st_(opt, 2))
    for i in range(4): a(f"ds_write_b128 {vr(t+2)}, {vr(G+4*i,4)} offset:{1024*i}")
    a("s_waitcnt lgkmcnt(0)\ns_barrier")
    if opt.get("wb"):
        m = {1: f"s_lshr_b32 s29, s2, 3\ns_add_u32 s29, s29, s{sW}", 2: f"s_mov_b32 s29, s{sW}", 3: f"s_and_b32 s29, s{sHP}, 15\ns_add_u32 s29, s29, s{sW}"}[opt["wb"]]
        a(m + "\ns_cmp_lg_u32 s29, 0\ns_cbranch_scc1 prj_nowb\nbuffer_wbl2 sc1\nprj_nowb:")
    if opt.get("tailst"): a("s_memrealtime s[68:69]")
    def reads(n): return [f"ds_read_b128 {vr(Fr(n)+4*sub,4)}, {vr(t+3)} offset:{n*2048 + sub*1024}" for sub in range(2)]
    FR = (VR, VR + 8, SY, SY + 8)
    def Fr(n): return FR[n & 3]
    pv = opt.get("pv", 1)
    if pv == 0:
        for n in range(3): emit(a, reads(n))
        for n in range(16):
            a(f"s_waitcnt lgkmcnt({min(4, 2*(15-n))})")
            k = 0
            for sub in range(2):
                for jt in range(2):
                    a(m16(acc + 8*sub + 4*jt, WO + (2*n+jt)*4, Fr(n) + 4*sub, n == 0))
                    if n + 3 < 16 and k == 0: emit(a, reads(n + 3))
                    k += 1
    else:
        FR = (VR, VR + 8, SY, SY + 8, KR, KR + 8, OB, OB + 8)
        Fr2 = lambda n: FR[n & 7]
        rd = lambda n: [f"ds_read_b128 {vr(Fr2(n)+4*sub,4)}, {vr(t+3)} offset:{n*2048 + sub*1024}" for sub in range(2)]
        for n in range(6): emit(a, rd(n))
        for n in range(0, 16, 2):
            a(f"s_waitcnt lgkmcnt({min(8, 2*(14-n))})")
            R = (rd(n + 6) + rd(n + 7)) if n + 6 < 16 else []
            k = 0
            for m in (n, n + 1):
                for sub in range(2):
                    for jt in range(2):
                        a(m16(acc + 8*sub + 4*jt, WO + (2*m+jt)*4, Fr2(m) + 4*sub, m == 0))
                        if k % 2 == 1 and R: a(R.pop(0))
                        k += 1
    if opt.get("tailst"): a("s_memrealtime s[70:71]")
    a("s_nop 7")
    P = SX
    for sub in range(2):
        for jt in range(2):
            for i in range(2): a(f"v_cvt_pk_bf16_f32 {vr(P+4*sub+2*jt+i)}, {vr(acc+8*sub+4*jt+2*i)}, {vr(acc+8*sub+4*jt+2*i+1)}")
    a("s_nop 1")
    for sub in range(2): a(f"v_permlane16_swap_b32 {vr(P+4*sub)}, {vr(P+4*sub+2)}\nv_permlane16_swap_b32 {vr(P+4*sub+1)}, {vr(P+4*sub+3)}")
    for sub in range(2): a(f"buffer_store_dwordx4 {vr(P+4*sub,4)}, {vr(t+4)}, s[{SRD_O}:{SRD_O+3}], s{52+sub} offen sc1")
    if opt.get("clean"):
        for P2, so in ((SY + 0, sOA), (SY + 4, sOB)): a(f"buffer_store_dwordx4 {vr(OB+ (P2-SY),4)}, {vr(vOs)}, {WS}, s{so} offen sc1")
    emit(a, st_(opt, 3))

def kd(name, vgpr):
    return f""".amdhsa_kernel {name}
  .amdhsa_next_free_vgpr {vgpr}
  .amdhsa_next_free_sgpr 102
  .amdhsa_accum_offset {vgpr}
  .amdhsa_group_segment_fixed_size 0
  .amdhsa_kernarg_size 72
  .amdhsa_user_sgpr_count 2
  .amdhsa_user_sgpr_kernarg_segment_ptr 1
  .amdhsa_system_sgpr_workgroup_id_x 1
  .amdhsa_float_denorm_mode_32 3
.end_amdhsa_kernel
"""

DOC = """;
; Generated by my own script (register maps, counted waits and wait states are derived there).
"""

def build(opt):
    ref = open("cdna_kernels/" + NAME + ".s.ref").read().split("\n")
    hdr = [l for l in ref if l.startswith(";") and "@launch" not in l]
    out = "\n".join(hdr) + "\n; @launch grid=(256,1,1) block=(512,1,1) lds=163840\n" + DOC
    a = Asm()
    kn = NAME + "_kernel"
    a(f".globl {kn}\n.p2align 8\n.type {kn},@function")
    a.label(kn)
    if opt.get("stamp"):
        a("s_memrealtime s[88:89]"); emit(a, st_(opt, 0))
    a("; ---- ids, pointers ----"); prologue(a, kn, opt)
    a("; ==== phase 1: QKV projection ===="); phase1(a, opt)
    a("; ==== phase 2: attention ===="); phase2(a, opt)
    a("; ==== phase 3: output projection ===="); phase3(a, opt)
    errs = check_linear(a.lines, "main")
    dump_stamps(a, opt)
    a.label(kn + "_end")
    a("s_endpgm")
    n0 = len(a.lines)
    fallback(a, opt)
    a("code_end:")
    errs += check_linear(a.lines[n0:], "fallback")
    for e in errs[:8]: print("HAZARD", len(errs), e, file=sys.stderr)
    out += '.amdgcn_target "amdgcn-amd-amdhsa--gfx950"\n.text\n' + a.text()
    out += '.section .rodata,"a"\n.p2align 6\n' + kd(kn, 256)
    return out

if __name__ == "__main__":
    import json
    opt = json.loads(sys.argv[2]) if len(sys.argv) > 2 else {}
    open(sys.argv[1], "w").write(build(opt))
```

```python
import sys, math, struct
from asmlib import Asm, vr, sr, check_linear

NAME = "concat_heads__mha_block__softmax_full_mha__prompt"
WS_K, WS_V, WS_O = 0, 4 << 20, 8 << 20
WS_F = 12 << 20
WS_S = 13 << 20
WS_SIZE = 14 << 20
QSCALE = 0.25 * math.log2(math.e)
LDS_W, LDS_K, LDS_C, LDS_ST = 98304, 131072, 147456, 131072

def f32hex(x): return "0x%08x" % struct.unpack("<I", struct.pack("<f", x))[0]

sW = 3
sP, sHP, sRB, sHD, sG = 24, 25, 26, 27, 28
SRD_X, SRD_W, SRD_WS, SRD_O = 8, 12, 16, 20
WS = f"s[{SRD_WS}:{SRD_WS+3}]"; WW = f"s[{SRD_W}:{SRD_W+3}]"; XX = f"s[{SRD_X}:{SRD_X+3}]"
sFL2, sNON2 = 38, 39
sKB, sT0, sFL, sNON, sKO, sVO, sTO, sKS, sCNT, sVB = 48, 49, 50, 51, 52, 53, 54, 55, 56, 57
sOA, sOB, sST, sWB = 4, 5, 6, 7
sSPIN, sV0, sV1 = 98, 99, 100
sXCC, sFAST = 101, 43
WO = 4
vXo, vWo, vXa, vWa, vTch = 4, 8, 10, 14, 16
F1 = 20; aQ, aK, aV = 76, 92, 108
KO = 4
vKl, vCn, vKp, vVa, vKw = 124, 125, 126, 127, 128
QA, QB, SX, SY, OA, OB, KR, VR = 132, 136, 140, 156, 172, 188, 204, 220
IDX, vK, vV, vVb, vFl, vNon, vOs, vWs, vWr = 236, 237, 238, 239, 240, 241, 242, 243, 244
vT = 248

class VM:
    def __init__(self): self.ops = []
    def issue(self, tag, n=1): self.ops += [tag] * n
    def wait(self, tag):
        if tag not in self.ops: return []
        k = len(self.ops) - 1 - max(i for i, x in enumerate(self.ops) if x == tag)
        self.ops = self.ops[len(self.ops) - k:] if k else []
        return [f"s_waitcnt vmcnt({k})"]

def srd(a, d, lo, size):
    a(f"s_mov_b32 s{d}, s{lo}\ns_mov_b32 s{d+1}, s{lo+1}\ns_mov_b32 s{d+2}, {size}\ns_mov_b32 s{d+3}, 0x20000")
def st_(opt, i):
    if not opt.get("stamp") or i not in opt.get("stamps", range(14)): return []
    return [f"{'s_memrealtime' if opt.get('abs') else 's_memtime'} s[{60+2*i}:{61+2*i}]"]
def emit(a, L):
    for x in L: a(x)
def m16(d, A, B, first=False):
    return f"v_mfma_f32_16x16x32_bf16 {vr(d,4)}, {vr(A,4)}, {vr(B,4)}, {'0' if first else vr(d,4)}"
def lcg(s): return f"s_mul_i32 s{s}, s{s}, 1664525\ns_add_u32 s{s}, s{s}, 1013904223"

def dump_stamps(a, opt):
    if not opt.get("stamp"): return
    a("s_memrealtime s[90:91]\ns_waitcnt lgkmcnt(0)")
    a(f"s_lshl_b32 s92, s2, 3\ns_add_u32 s92, s92, s{sW}\ns_lshl_b32 s92, s92, 6\ns_add_u32 s92, s92, {WS_S}\nv_mov_b32 v2, s92")
    for i in range(1, 14):
        a(f"s_sub_u32 s93, s{60+2*i}, {0 if opt.get('abs') else 's60'}\nv_mov_b32 v3, s93\nbuffer_store_dword v3, v2, {WS}, 0 offen offset:{4*i}")
    a(f"v_mov_b32 v3, s88\nbuffer_store_dword v3, v2, {WS}, 0 offen offset:56")
    a(f"v_mov_b32 v3, s90\nbuffer_store_dword v3, v2, {WS}, 0 offen offset:60")

def prologue(a, lab, opt):
    a(f"s_cmp_ge_u32 s2, 256\ns_cbranch_scc1 {lab}_end")
    a("s_and_b32 s29, s2, 7\ns_lshr_b32 s30, s2, 3")
    a(f"s_lshr_b32 s{sP}, s29, 2\ns_mul_i32 s31, s{sP}, 24")
    if opt.get("kl", 0) == 0:
        a("s_load_dwordx4 s[4:7], s[0:1], s31\ns_load_dwordx2 s[36:37], s[0:1], 64\ns_add_u32 s31, s31, 16")
        a("s_load_dwordx2 s[32:33], s[0:1], s31\ns_load_dwordx2 s[34:35], s[0:1], 48")
    else:
        a("s_load_dwordx4 s[4:7], s[0:1], s31")
    a("v_lshrrev_b32 v1, 6, v0\ns_and_b32 s29, s29, 3\ns_lshl_b32 s29, s29, 2")
    a(f"v_readfirstlane_b32 s{sW}, v1")
    if opt.get("map", 1) == 0:
        a(f"s_and_b32 s{sRB}, s30, 7\ns_lshr_b32 s30, s30, 3\ns_add_u32 s{sHP}, s29, s30")
    else:
        a(f"s_and_b32 s{sHP}, s30, 15\ns_lshr_b32 s30, s30, 4\ns_lshr_b32 s29, s29, 1\ns_add_u32 s{sRB}, s29, s30")
    a("v_and_b32 v0, 63, v0")
    a(f"s_lshr_b32 s{sHD}, s{sW}, 2\ns_and_b32 s{sG}, s{sW}, 3")

def early_constants(a, opt):
    t = vT
    a(f"v_and_b32 {vr(t)}, 0x23, v0\nv_and_b32 {vr(t+1)}, 12, v0\nv_lshl_or_b32 {vr(t)}, {vr(t+1)}, 1, {vr(t)}")
    a(f"v_and_b32 {vr(t+1)}, 16, v0\nv_lshrrev_b32 {vr(t+1)}, 2, {vr(t+1)}\nv_or_b32 {vr(t)}, {vr(t)}, {vr(t+1)}\nv_lshlrev_b32 {vr(vKp)}, 4, {vr(t)}")
    a(f"v_lshrrev_b32 {vr(t+1)}, 4, v0\nv_lshlrev_b32 {vr(t+1)}, 9, {vr(t+1)}\nv_and_b32 {vr(t+2)}, 15, v0\nv_lshl_add_u32 {vr(t+1)}, {vr(t+2)}, 4, {vr(t+1)}")
    a(f"s_lshl_b32 s30, s{sHD}, 8\ns_lshl_b32 s31, s{sT0}, 11\ns_add_u32 s30, s30, s31\nv_add_u32 {vr(vVa)}, s30, {vr(t+1)}")
    a(f"s_lshl_b32 s30, s{sT0}, 10\ns_add_u32 s{sKS}, s30, s{sKB}")
    a(f"s_lshl_b32 s30, s{sHD}, 13\ns_lshl_b32 s31, s{sG}, 11\ns_add_u32 s30, s30, s31\ns_add_u32 s30, s30, {LDS_K}\nv_add_u32 {vr(vKw)}, s30, {vr(vKp)}")
    a(f"v_mov_b32 {vr(IDX)}, 0xdddddddd\nv_lshlrev_b32 {vr(vK)}, 4, v0")
    a(f"v_and_b32 {vr(t)}, 27, v0\nv_cmp_eq_u32 vcc, 16, {vr(t)}\nv_mov_b32 {vr(t+1)}, 0x3f803f80\nv_mov_b32 {vr(t+2)}, 0")
    a(f"v_cndmask_b32 {vr(VR)}, {vr(t+2)}, {vr(t+1)}, vcc\nv_cndmask_b32 {vr(VR+1)}, {vr(t+2)}, {vr(t+1)}, vcc")
    for i in range(2, 16, 2): a(f"v_pk_mov_b32 {vr(VR+i,2)}, {vr(VR,2)}, {vr(VR,2)} op_sel:[0,1]")
    a(f"v_mov_b32 {vr(OA)}, 0\nv_mov_b32 {vr(OA+1)}, 0")
    for i in range(2, 32, 2): a(f"v_pk_mov_b32 {vr(OA+i,2)}, {vr(OA,2)}, {vr(OA,2)} op_sel:[0,1]")
    for i in range(8, 16, 2): a(f"v_pk_mov_b32 {vr(SY+i,2)}, {vr(OA,2)}, {vr(OA,2)} op_sel:[0,1]")
    a(f"v_lshrrev_b32 {vr(t+3)}, 5, v0\nv_and_b32 {vr(t+1)}, 15, v0\nv_lshlrev_b32 {vr(t+1)}, 4, {vr(t+1)}\nv_lshl_add_u32 {vr(t)}, {vr(t+3)}, 9, {vr(t+1)}")
    a(f"s_lshl_b32 s29, s{sHD}, 8\nv_add_u32 {vr(vV)}, s29, {vr(t)}")
    a(f"s_lshl_b32 s29, s{sRB}, 14\nv_add_u32 {vr(vVb)}, s29, {vr(vV)}")
    a(f"s_lshl_b32 s29, s{sHD}, 13\ns_add_u32 s29, s29, {LDS_K}\nv_add_u32 {vr(vKl)}, s29, {vr(vK)}")
    a(f"v_and_b32 {vr(vFl)}, 15, v0\nv_lshlrev_b32 {vr(vFl)}, 7, {vr(vFl)}")
    a(f"v_lshl_add_u32 {vr(vOs)}, {vr(t+3)}, 8, {vr(t+1)}\nv_and_b32 {vr(t)}, 16, v0\nv_lshl_add_u32 {vr(vOs)}, {vr(t)}, 6, {vr(vOs)}")
    a(f"s_lshl_b32 s30, s{sP}, 6\ns_add_u32 s30, s30, s{sT0}\ns_lshl_b32 s30, s30, 15\ns_lshl_b32 s29, s{sHP}, 11\ns_add_u32 s30, s30, s29")
    a(f"s_lshl_b32 s29, s{sHD}, 9\ns_add_u32 s30, s30, s29\ns_add_u32 s{sOA}, s30, {WS_O}\ns_add_u32 s{sOB}, s{sOA}, 32768")
    a(f"v_bfe_u32 {vr(t)}, v0, 4, 1\nv_lshlrev_b32 {vr(t+1)}, 1, {vr(t)}\nv_xor_b32 {vr(t+1)}, {vr(t+1)}, v0\nv_and_b32 {vr(t+1)}, 3, {vr(t+1)}\nv_lshlrev_b32 {vr(t+1)}, 4, {vr(t+1)}")
    a(f"v_lshrrev_b32 {vr(t+2)}, 2, v0\nv_lshl_add_u32 {vr(vWs)}, {vr(t+2)}, 10, {vr(t+1)}")
    a(f"s_and_b32 s29, s{sHP}, 1\ns_lshl_b32 s29, s29, 9\ns_lshl_b32 s30, s{sW}, 6\ns_add_u32 s{sWB}, s29, s30")
    a(f"s_lshl_b32 s{sST}, s{sW}, 12\ns_add_u32 s{sST}, s{sST}, {LDS_ST}")
    a(f"v_lshlrev_b32 {vr(t+1)}, 10, {vr(t+3)}\nv_mul_u32_u24 {vr(t)}, 288, {vr(t)}\nv_add3_u32 {vr(t+1)}, {vr(t+1)}, {vr(t)}, s{sST}")
    a(f"v_bfe_u32 {vr(t)}, v0, 2, 2\nv_lshl_add_u32 {vr(t+1)}, {vr(t)}, 6, {vr(t+1)}\nv_and_b32 {vr(t)}, 3, v0\nv_lshl_add_u32 {vr(vWr)}, {vr(t)}, 3, {vr(t+1)}\nv_xor_b32 {vr(vWr+1)}, 32, {vr(vWr)}")
    a(f"s_lshl_b32 s{sTO}, s{sRB}, 13\ns_add_u32 s{sTO}, s{sTO}, 4096")
    emit(a, adv())
    a(f"v_mov_b32 {vr(vCn)}, {LDS_C}\ns_cmp_lg_u32 s{sW}, 0\ns_cbranch_scc1 early_done\nds_write_b32 {vr(vCn)}, {vr(OA)}\nearly_done:")
    for i in range(4): a(f"v_mov_b32 {vr(KR+i)}, -1")

def phase1(a, opt):
    t = vT
    vm = VM()
    a(f"s_lshl_b32 s29, s{sRB}, 8\ns_lshl_b32 s30, s{sW}, 5\ns_add_u32 s29, s29, s30\ns_lshl_b32 s29, s29, 10")
    if opt.get("emu4"): a(f"s_and_b32 s30, s{sHP}, 1\ns_lshl_b32 s30, s30, 14\ns_add_u32 s29, s29, s30")
    a(f"v_lshrrev_b32 {vr(t)}, 4, v0\nv_and_b32 {vr(t+1)}, 7, v0\nv_xor_b32 {vr(t)}, {vr(t)}, {vr(t+1)}\nv_lshlrev_b32 {vr(t)}, 4, {vr(t)}")
    a(f"v_lshrrev_b32 {vr(t+1)}, 3, v0\nv_lshl_add_u32 {vr(t+1)}, {vr(t+1)}, 10, s29")
    a(f"v_xor_b32 {vr(t+2)}, 64, {vr(t)}")
    a(f"v_add_u32 {vr(vXo)}, {vr(t+1)}, {vr(t)}")
    a(f"v_add_u32 {vr(vXo+1)}, {vr(t+1)}, {vr(t+2)}\nv_add_u32 {vr(vXo+1)}, 7168, {vr(vXo+1)}")
    a(f"v_add_u32 {vr(vXo+2)}, 14336, {vr(vXo)}\nv_add_u32 {vr(vXo+3)}, 14336, {vr(vXo+1)}")
    if opt.get("map", 1) == 0:
        a(f"s_add_u32 s40, s{sHP}, s{sRB}\ns_lshl_b32 s40, s40, 1")
    else:
        a(f"s_lshr_b32 s40, s{sHP}, 1\ns_add_u32 s40, s40, s{sRB}\ns_lshl_b32 s40, s40, 1\ns_and_b32 s41, s{sHP}, 1\ns_add_u32 s40, s40, s41\ns_lshl_b32 s40, s40, 1")
        if opt.get("odd"): a(f"s_lshr_b32 s41, s{sHP}, {opt['odd']}\ns_and_b32 s41, s41, 1\ns_add_u32 s40, s40, s41")
    if opt.get("starts"):
        tbl = sum(v << (8 * i) for i, v in enumerate(opt["starts"]))
        a(f"s_and_b32 s40, s40, 6\ns_lshl_b32 s40, s40, 2\ns_lshr_b32 s40, {tbl}, s40\ns_and_b32 s40, s40, 7")
    fl = opt.get("flip", 0)
    if fl:
        a(f"s_lshr_b32 s29, s{sHP}, {1 + fl}\ns_and_b32 s29, s29, 1\ns_sub_u32 s{sV0}, s40, s29\ns_add_u32 s40, s40, s29")
    kreg = lambda c: (sV0 if (fl and c & 1) else 40)
    a(f"s_lshl_b32 s42, s{sW}, 12\ns_mul_i32 s43, s{sW}, 1536\ns_add_u32 s43, s43, {LDS_W}\ns_mov_b32 s46, -1\ns_mov_b32 s47, 0")
    def wsetup():
        a(f"s_mul_i32 s29, s{sW}, 96\ns_lshl_b32 s30, s{sHP}, 6")
        for i in range(2):
            d = vWo + i
            a(f"v_add_u32 {vr(t)}, s29, v0")
            if i: a(f"v_add_u32 {vr(t)}, 64, {vr(t)}")
            a(f"v_mul_u32_u24 {vr(t+1)}, 1366, {vr(t)}\nv_lshrrev_b32 {vr(t+1)}, 16, {vr(t+1)}")
            a(f"v_mul_u32_u24 {vr(t+2)}, 48, {vr(t+1)}\nv_sub_u32 {vr(t+2)}, {vr(t)}, {vr(t+2)}")
            a(f"v_bfe_u32 {vr(t+3)}, {vr(t+2)}, 2, 2\nv_lshl_add_u32 {vr(t+3)}, {vr(t+1)}, 2, {vr(t+3)}")
            a(f"v_mul_u32_u24 {vr(d)}, 3072, {vr(t+3)}")
            a(f"v_lshrrev_b32 {vr(t+3)}, 4, {vr(t+2)}\nv_lshl_add_u32 {vr(d)}, {vr(t+3)}, 10, {vr(d)}")
            a(f"v_and_b32 {vr(t+1)}, 2, {vr(t+1)}\nv_xor_b32 {vr(t+2)}, {vr(t+2)}, {vr(t+1)}\nv_and_b32 {vr(t+2)}, 3, {vr(t+2)}")
            a(f"v_lshl_add_u32 {vr(d)}, {vr(t+2)}, 4, {vr(d)}")
            if i: a(f"s_sub_u32 s30, s30, 1024")
            a(f"v_add_u32 {vr(d)}, s30, {vr(d)}")
    if opt.get("emu4"):
        def wsetup():
            a(f"s_mul_i32 s29, s{sW}, 192\ns_lshr_b32 s30, s{sHP}, 1\ns_lshl_b32 s30, s30, 7")
            for i, d in enumerate((vWo, vWo + 1, vTch)):
                a(f"v_add_u32 {vr(t)}, s29, v0\nv_add_u32 {vr(t)}, {64*i}, {vr(t)}\nv_mul_u32_u24 {vr(t+1)}, 2731, {vr(t)}\nv_lshrrev_b32 {vr(t+1)}, 16, {vr(t+1)}")
                a(f"v_mul_u32_u24 {vr(t+2)}, 24, {vr(t+1)}\nv_sub_u32 {vr(t+2)}, {vr(t)}, {vr(t+2)}\nv_mul_u32_u24 {vr(d)}, 3072, {vr(t+1)}")
                a(f"v_lshrrev_b32 {vr(t+3)}, 3, {vr(t+2)}\nv_lshl_add_u32 {vr(d)}, {vr(t+3)}, 10, {vr(d)}\nv_and_b32 {vr(t+2)}, 7, {vr(t+2)}\nv_lshl_add_u32 {vr(d)}, {vr(t+2)}, 4, {vr(d)}")
                a(f"v_add_u32 {vr(d)}, s30, {vr(d)}\nv_subrev_u32 {vr(d)}, {1024*i}, {vr(d)}")
    order = opt.get("order", 0)
    if order in (0, 3, 4): wsetup()
    a("s_waitcnt lgkmcnt(0)")
    emit(a, st_(opt, 1))
    srd(a, SRD_X, 4, 0x200000); srd(a, SRD_W, 6, 0x180000)
    def dmax(c):
        L = [f"s_add_u32 s41, s{kreg(c)}, {c}\ns_and_b32 s41, s41, 7\ns_add_u32 m0, s42, {(c%3)*32768}\ns_lshl_b32 s44, s41, 7"]
        nx = 2 if opt.get("emu4") else 4
        for i in range(nx): L.append(f"buffer_load_dwordx4 {vr(vXo+i)}, {XX}, s44 offen offset:{1024*i} lds")
        vm.issue(f"x{c}", nx)
        return L
    def dmaw(c):
        L = [f"s_add_u32 s41, s{kreg(c)}, {c}\ns_and_b32 s41, s41, 7\ns_add_u32 m0, s43, {(c%3)*12288}\ns_mul_i32 s45, s41, 196608\nbuffer_load_dwordx4 {vr(vWo)}, {WW}, s45 offen lds",
             f"s_mov_b64 exec, s[46:47]\nbuffer_load_dwordx4 {vr(vWo+1)}, {WW}, s45 offen offset:1024 lds\ns_mov_b64 exec, -1"]
        if opt.get("emu4"):
            L = [L[0]] + [f"buffer_load_dwordx4 {vr(vWo+1)}, {WW}, s45 offen offset:1024 lds", f"buffer_load_dwordx4 {vr(vTch)}, {WW}, s45 offen offset:2048 lds"]
            vm.issue(f"w{c}", 1)
        vm.issue(f"w{c}", 2)
        return L
    def landed(c):
        tags = [x for x in (f"x{c}", f"w{c}") if x in vm.ops]
        if not tags: return []
        return vm.wait(max(tags, key=lambda x: max(i for i, y in enumerate(vm.ops) if y == x)))
    if opt.get("xtouch"):
        a(f"s_lshl_b32 s29, s{sRB}, 18\ns_lshl_b32 s30, s{sHP}, 14\ns_add_u32 s29, s29, s30\ns_lshl_b32 s30, s{sW}, 11\ns_add_u32 s29, s29, s30")
        a(f"v_lshlrev_b32 {vr(vTch)}, 7, v0\ns_mov_b64 exec, 0xffff\nbuffer_load_dword {vr(vTch+1)}, {vr(vTch)}, {XX}, s29 offen\ns_mov_b64 exec, -1"); vm.issue("T")
        xo = opt["xtouch"]
        if xo == 1: emit(a, dmaw(0) + dmaw(1) + dmax(0) + dmax(1))
        elif xo == 2: emit(a, dmaw(0) + dmax(0) + dmaw(1) + dmax(1))
        else: emit(a, dmax(0) + dmaw(0) + dmax(1) + dmaw(1))
    elif order == 3:
        emit(a, dmaw(0) + dmaw(1) + dmax(0) + dmax(1))
    elif order == 4:
        emit(a, dmaw(0) + dmax(0) + dmaw(1) + dmax(1))
    elif order == 0:
        emit(a, dmax(0) + dmaw(0) + dmax(1) + dmaw(1))
    else:
        emit(a, dmax(0)); wsetup()
        if order == 2: emit(a, dmaw(0))
    if opt.get("kl", 0):
        a(f"s_mul_i32 s31, s{sP}, 24\ns_add_u32 s31, s31, 16\ns_load_dwordx2 s[36:37], s[0:1], 64\ns_load_dwordx2 s[32:33], s[0:1], s31\ns_load_dwordx2 s[34:35], s[0:1], 48\ns_waitcnt lgkmcnt(0)")
    srd(a, SRD_WS, 36, WS_SIZE); srd(a, SRD_O, 34, 0x400000)
    a(f"s_lshl_b32 s30, s{sP}, 4\ns_add_u32 s30, s30, s{sHP}\ns_lshl_b32 s31, s30, 17")
    a(f"s_lshl_b32 s{sFL}, s30, 11\ns_add_u32 s{sFL}, s{sFL}, {WS_F}\ns_add_u32 s29, s{sFL}, 1024\ns_load_dword s{sNON}, s[36:37], s29")
    a(f"s_lshl_b32 s29, s{sP}, 3\ns_add_u32 s29, s29, s{sRB}\ns_lshl_b32 s29, s29, 12\ns_add_u32 s{sFL2}, s29, {WS_F + 0x10000}\ns_add_u32 s29, s{sFL2}, 2048\ns_load_dword s{sNON2}, s[36:37], s29")
    a(f"s_lshl_b32 s{sKB}, s{sHD}, 16\ns_add_u32 s{sKB}, s{sKB}, s31\ns_add_u32 s{sVB}, s31, {WS_V}")
    a(f"s_lshl_b32 s{sT0}, s{sRB}, 3\ns_lshl_b32 s29, s{sG}, 1\ns_add_u32 s{sT0}, s{sT0}, s29")
    a(f"v_bfe_u32 {vr(t)}, v0, 1, 3\nv_lshrrev_b32 {vr(t+1)}, 4, v0\nv_xor_b32 {vr(t)}, {vr(t)}, {vr(t+1)}\nv_lshlrev_b32 {vr(t)}, 4, {vr(t)}")
    a(f"v_and_b32 {vr(t+2)}, 15, v0\nv_lshl_add_u32 {vr(t)}, {vr(t+2)}, 7, {vr(t)}")
    a(f"s_lshl_b32 s29, s{sG}, 13\nv_add_u32 {vr(vXa)}, s29, {vr(t)}\nv_xor_b32 {vr(vXa+1)}, 64, {vr(vXa)}")
    a(f"v_add_u32 {vr(vXa+2)}, 0x10000, {vr(vXa)}\nv_add_u32 {vr(vXa+3)}, 0x10000, {vr(vXa+1)}")
    a(f"v_mul_u32_u24 {vr(t)}, 1536, {vr(t+1)}\nv_bfe_u32 {vr(t+2)}, v0, 2, 2\nv_lshl_add_u32 {vr(t)}, {vr(t+2)}, 6, {vr(t)}")
    a(f"v_and_b32 {vr(t+2)}, 3, v0\nv_lshl_add_u32 {vr(t)}, {vr(t+2)}, 3, {vr(t)}")
    a(f"v_xor_b32 {vr(t+1)}, s{sHD}, {vr(t+1)}\nv_and_b32 {vr(t+1)}, 1, {vr(t+1)}\nv_lshl_add_u32 {vr(t)}, {vr(t+1)}, 5, {vr(t)}")
    a(f"v_add_u32 {vr(vWa)}, {LDS_W}, {vr(t)}")
    if opt.get("warm"):
        a(f"s_lshr_b32 s29, s2, 3\ns_cmp_lg_u32 s29, 0\ns_cbranch_scc1 warm_done\ns_getpc_b64 s[58:59]\nwarm_pc:")
        a(f"s_lshl_b32 s29, s{sW}, 12\nv_lshlrev_b32 {vr(t)}, 6, v0\nv_add_u32 {vr(t)}, s29, {vr(t)}\nv_min_u32 {vr(t)}, code_end-warm_pc-4, {vr(t)}")
        a(f"global_load_dword {vr(t+7)}, {vr(t)}, s[58:59]\nwarm_done:")
    early_constants(a, opt)
    if opt.get("sentc", 6) == -1:
        emit(a, [f"buffer_store_dwordx4 {vr(KR,4)}, {vr(vOs)}, {WS}, s{so} offen sc1" for so in (sOA, sOB)]); vm.issue("S", 2)
    if order == 1: emit(a, dmaw(0) + dmax(1) + dmaw(1))
    if order == 2: emit(a, dmax(1) + dmaw(1))
    def reads(c, s, fs):
        if opt.get("nord"): return ["s_nop 0"] * 10
        st = c % 3
        F = F1 + 28 * fs
        xa = vXa + s + (2 if st == 2 else 0)
        xi = 32768 if st == 1 else 0
        wi = st * 12288 + s * 6144
        W = lambda seg, u: f"ds_read_b64_tr_b16 {vr(F+16+4*seg+2*u,2)}, {vr(vWa)} offset:{wi + u*768 + seg*256}"
        X = lambda ts: f"ds_read_b128 {vr(F+4*ts,4)}, {vr(xa)} offset:{xi + ts*2048}"
        return [W(0, 0), W(0, 1), X(0), W(1, 0), W(1, 1), X(1), W(2, 0), W(2, 1), X(2), X(3)]
    def mfmas(fs, first, kv_first=False):
        if opt.get("nomf"): return ["s_nop 0"] * 12
        F = F1 + 28 * fs
        Q = [m16(aQ+4*ts, F+16, F+4*ts, first) for ts in range(4)]
        K = [m16(aK+4*ts, F+20, F+4*ts, first) for ts in range(4)]
        V = [m16(aV+4*ts, F+4*ts, F+24, first) for ts in range(4)]
        if kv_first: return V + K + Q
        return [x for ts in range(4) for x in (Q[ts], K[ts], V[ts])]
    emit(a, landed(0)); a("s_waitcnt lgkmcnt(0)\ns_barrier")
    emit(a, st_(opt, 4))
    def p1_loop(dpos, vm_in):
        vm.ops = list(vm_in)
        def dma_for(c):
            D = (dmax(c + 2) + dmaw(c + 2)) if c + 2 < 8 else []
            if opt.get("nodma"): D = []; vm.ops = [x for x in vm.ops if x[1:] != str(c + 2)]
            if c == opt.get("sentc", 6):
                D = D + [f"buffer_store_dwordx4 {vr(KR,4)}, {vr(vOs)}, {WS}, s{so} offen sc1" for so in (sOA, sOB)]; vm.issue("S", 2)
            return D
        def spread(M, parts):
            slots = [[] for _ in M]
            for f, l, items in parts:
                k = 0
                for i in range(f, l + 1):
                    n = -(-(len(items) - k) // (l + 1 - i))
                    slots[i] += items[k:k+n]; k += n
            for m, sl in zip(M, slots):
                a(m); emit(a, sl)
        emit(a, reads(0, 0, 0))
        Dn = dma_for(0) if dpos == 1 else None
        if dpos == 1: emit(a, Dn)
        for c in range(8):
            M = mfmas(0, c == 0); X = reads(c, 1, 1)
            a("s_waitcnt lgkmcnt(0)")
            if dpos == 0: spread(M, [(0, 4, X), (5, 11, dma_for(c))])
            elif dpos == 2: spread(M, [(0, 4, dma_for(c)), (4, 8, X)])
            elif dpos == 3: spread(M, [(0, 6, dma_for(c)), (0, 9, X)])
            elif dpos == 4: spread(M, [(0, 4, X), (8, 11, dma_for(c))])
            elif dpos == 5: Dn = dma_for(c); spread(M, [(0, 4, X)])
            else: spread(M, [(0, 4, X)])
            M = mfmas(1, False, c == 7)
            a("s_waitcnt lgkmcnt(0)")
            if c < 7:
                nb = opt.get("nb", 3)
                if dpos == 5: nb = 6; spread(M[:nb], [(0, nb - 1, Dn)])
                else: emit(a, M[:nb])
                emit(a, landed(c + 1)); a("s_barrier")
                X = reads(c + 1, 0, 0)
                if dpos == 1: spread(M[nb:], [(0, 4, X), (2, 11 - nb, dma_for(c + 1))])
                else: spread(M[nb:], [(0, min(4, 11 - nb), X)])
            else:
                a("s_barrier")
                emit(a, M)

    dp = opt.get("dpos", 0)
    start = list(vm.ops)
    if isinstance(dp, int):
        p1_loop(dp, start)
    else:
        a(f"s_cmp_lg_u32 s{sHD}, 0\ns_cbranch_scc1 p1_hd1")
        n0 = len(a.lines)
        p1_loop(dp[0], start)
        a("s_branch p1_done\np1_hd1:")
        p1_loop(dp[1], start)
        a("p1_done:")
    emit(a, st_(opt, 5))
    KA, VA = 20, 28
    a(f"s_mov_b32 s29, {f32hex(QSCALE)}")
    a(lcg(sNON)); a(lcg(sNON2))
    a(f"s_getreg_b32 s{sXCC}, hwreg(HW_REG_XCC_ID, 0, 4)")
    a("s_mov_b32 s46, 0xffff\ns_mov_b32 s47, 0xffff")
    srd(a, SRD_W, 32, 0x80000)
    def qpart():
        for i in range(16): a(f"v_mul_f32 {vr(aQ+i)}, s29, {vr(aQ+i)}")
        for i in range(8): a(f"v_cvt_pk_bf16_f32 {vr(QA+i)}, {vr(aQ+2*i)}, {vr(aQ+2*i+1)}")
        a(f"v_mov_b32 {vr(vNon)}, s{sNON}\ns_nop 0")
        for Q in (QA, QB): a(f"v_permlane16_swap_b32 {vr(Q)}, {vr(Q+2)}\nv_permlane16_swap_b32 {vr(Q+1)}, {vr(Q+3)}")
    for ts in range(4):
        for i in range(2): a(f"v_cvt_pk_bf16_f32 {vr(VA+2*ts+i)}, {vr(aV+4*ts+2*i)}, {vr(aV+4*ts+2*i+1)}")
    for i in range(2): a(f"buffer_store_dwordx4 {vr(VA+4*i,4)}, {vr(vVa)}, {WS}, s{sVB} offen offset:{2048*i} sc1")
    for ts in range(4):
        for i in range(2): a(f"v_cvt_pk_bf16_f32 {vr(KA+2*ts+i)}, {vr(aK+4*ts+2*i)}, {vr(aK+4*ts+2*i+1)}")
    for i in range(2): a(f"ds_write_b128 {vr(vVa)}, {vr(VA+4*i,4)} offset:{2048*i}")
    for K in (KA, KA + 4): a(f"v_permlane16_swap_b32 {vr(K)}, {vr(K+2)}\nv_permlane16_swap_b32 {vr(K+1)}, {vr(K+3)}")
    for i in range(2): a(f"ds_write_b128 {vr(vKw)}, {vr(KA+4*i,4)} offset:{1024*i}")
    for i in range(2): a(f"buffer_store_dwordx4 {vr(KA+4*i,4)}, {vr(vKp)}, {WS}, s{sKS} offen offset:{1024*i} sc1")
    if opt.get("sentc", 6) == 8:
        emit(a, [f"buffer_store_dwordx4 {vr(KR,4)}, {vr(vOs)}, {WS}, s{so} offen sc1" for so in (sOA, sOB)])
    if not opt.get("qlate", 0): qpart()
    a("s_waitcnt lgkmcnt(0)\ns_barrier")
    emit(a, st_(opt, 6))
    emit(a, [f"ds_read_b128 {vr(KO,4)}, {vr(vKl)}"] + vread(VR, 0))
    if opt.get("qlate", 0): qpart()

def smf(o, v, b): return f"v_smfmac_f32_32x32x32_bf16 {vr(o,16)}, {vr(v,4)}, {vr(b,8)}, {vr(IDX)}"
CSTAND = "0.5"
def qk(d, k, q, c=None):
    c = CSTAND if c is None else c
    return f"v_mfma_f32_32x32x16_bf16 {vr(d,16)}, {vr(k,4)}, {vr(q,4)}, {c}"

def step(X, Y, Oc, Op, Kn, Qn, Va, Vprev, extra, pos):
    L = []
    for i in range(16):
        L += extra.get(i, [])
        if i == pos[0]: L.append(smf(Op, Vprev, Y + 8))
        if i == pos[1]: L.append(qk(Y, Kn, Qn))
        if i == pos[2]: L.append(smf(Oc, Va, X))
        L.append(f"v_exp_f32 {vr(X+i)}, {vr(X+i)}")
    return L
def add(d, k, items): d.setdefault(k, []); d[k] += items
def vread(V, off):
    return ["s_mov_b64 exec, s[46:47]", f"ds_read_b128 {vr(V,4)}, {vr(vVb)} offset:{off}", f"ds_read_b128 {vr(V+4,4)}, {vr(vVb)} offset:{off+1024}", "s_mov_b64 exec, -1"]
def adv():
    return [f"s_add_u32 s{sTO}, s{sTO}, 4096", f"s_and_b32 s{sTO}, s{sTO}, 0xffff", f"s_add_u32 s{sKO}, s{sTO}, s{sKB}", f"s_lshl_b32 s{sVO}, s{sTO}, 1"]

def body(opt, t0, vm, hooks=None, last=False):
    pos = opt.get("pos", (2, 5, 10)); vpos = opt.get("vpos", 13); kpos = opt.get("kpos", 13)
    hooks = hooks or {}
    L = []
    if t0 >= 20 and opt.get("alt"):
        b = (t0 - 20) // 4
        hooks = dict(hooks)
        def mk(f0, b=b):
            hi = b & 1
            return lambda vm: [f"s_cmp_eq_u32 s{sHD}, {hi}", f"s_cbranch_scc1 alt_hi{b}", "s_setprio 0", f"s_branch alt_done{b}", f"alt_hi{b}:", "s_setprio 1", f"alt_done{b}:"] + (f0(vm) if f0 else [])
        hooks[(0, 'A', 0)] = mk(hooks.get((0, 'A', 0)))
    for j in range(4):
        K0 = KR + 4 * j; K1 = KR + 4 * ((j + 1) & 3)
        V0 = VR + 8 * (j & 1); V1 = VR + 8 * ((j + 1) & 1)
        ex = {'A': {}, 'B': {}}
        fin = last and j == 3
        for ph in 'AB':
            for i in range(16):
                if ph == 'A' and i == vpos and not fin:
                    add(ex['A'], i, ([f"v_add_u32 {vr(vVb)}, s{sVO}, {vr(vV)}"] if j == 3 else []) + vread(V1, ((j + 1) & 3) * 2048))
                if ph == 'A' and i == pos[2]: add(ex['A'], i, ["s_waitcnt lgkmcnt(0)"])
                if ph == 'B' and i == pos[1]: add(ex['B'], i, vm.wait(f"K{t0+j+1}"))
                if ph == 'B' and i == kpos and not last:
                    add(ex['B'], i, [f"buffer_load_dwordx4 {vr(K0,4)}, {vr(vK)}, {WS}, s{sKO} offen offset:{1024*j} {'sc1' if t0 < opt.get('kplain', 99) else opt.get('kflag', '')}"]); vm.issue(f"K{t0+j+4}")
                if ph == 'B' and i == max(14, kpos) and j == 3 and not last: add(ex['B'], i, adv())
                if (j, ph, i) in hooks: add(ex[ph], i, hooks[(j, ph, i)](vm))
        L += step(SX, SY, OA, OB, K0, QB, V0, V1 + 4, ex['A'], pos)
        B = step(SY, SX, OB, OA, K1, QA, V0, V0 + 4, ex['B'], pos)
        if fin: B = [x for x in B if not x.startswith(qk(SX, K1, QA))]
        L += B
    return L

def spin(lab, issue, test, sl=1):
    return [f"s_cbranch_scc1 {lab}_ok", f"s_mov_b32 s{sSPIN}, 0", f"{lab}_spin:", f"s_add_u32 s{sSPIN}, s{sSPIN}, 1", f"s_cmp_gt_u32 s{sSPIN}, 0x100000",
            f"s_cbranch_scc1 {lab}_ok", f"s_sleep {sl}"] + issue + ["s_waitcnt vmcnt(0)"] + test + [f"s_cbranch_scc0 {lab}_spin", f"{lab}_ok:"]
def ptest(s, r): return [f"v_cmp_eq_u32 vcc, s{s}, {vr(r)}", "s_nop 1", "s_cmp_eq_u64 vcc, -1"]
def vdma(c, vm):
    L = [f"s_add_u32 s30, s{sRB}, {c}", "s_and_b32 s30, s30, 7", "s_lshl_b32 s30, s30, 14", f"s_add_u32 m0, s30, s{sV0}", f"s_add_u32 s30, s30, s{sV1}"]
    for i in range(2): L.append(f"buffer_load_dwordx4 {vr(vK)}, {WS}, s30 offen offset:{1024*i} sc1 lds")
    vm.issue(f"V{c}", 2)
    return L

def only(hd, lab, L):
    return [f"s_cmp_lg_u32 s{sHD}, {hd}", f"s_cbranch_scc1 {lab}"] + L + [f"{lab}:"]

def own_chunk(opt, vm):
    pos = opt.get("pos", (2, 5, 10)); vpos = opt.get("vpos", 13)
    sy = opt.get("sync", ((2, 4, 5), (0, 4, 5)))
    up, down = opt.get("ownprio", (0, 5))
    out = []
    poll1 = [f"buffer_load_dword {vr(vT)}, {vr(vT+1)}, {WS}, s{sFL} offen sc1"]
    def publish(n):
        return [f"v_mov_b32 {vr(vT+2)}, 1", "s_waitcnt vmcnt(0)", "s_mov_b64 exec, 1", f"ds_add_rtn_u32 {vr(vT+2)}, {vr(vCn)}, {vr(vT+2)}",
                f"s_lshl_b32 s29, s{sRB}, 7", f"v_mov_b32 {vr(vT+3)}, s29", f"s_lshl_b32 s29, s{sHP}, 7", f"v_mov_b32 {vr(vT+5)}, s29", f"v_mov_b32 {vr(vT+6)}, s{sNON2}", f"s_xor_b32 s29, s{sNON2}, s{sXCC}", f"v_mov_b32 {vr(vT+7)}, s29",
                "s_waitcnt lgkmcnt(0)", f"v_cmp_eq_u32 vcc, 7, {vr(vT+2)}", "s_and_saveexec_b64 s[58:59], vcc", f"s_cbranch_execz own_notlast{n}",
                f"buffer_store_dword {vr(vNon)}, {vr(vT+3)}, {WS}, s{sFL} offen sc1", f"buffer_store_dwordx2 {vr(vT+6,2)}, {vr(vT+5)}, {WS}, s{sFL2} offen sc1",
                f"own_notlast{n}:", "s_mov_b64 exec, -1"] + st_(opt, 7)
    def fetch(hd):
        L = ["s_waitcnt vmcnt(0)"] + ptest(sNON, vT) + spin(f"own{hd}", poll1, ptest(sNON, vT)) + st_(opt, 8)
        L += [f"buffer_load_dwordx4 {vr(KR+4*i,4)}, {vr(vK)}, {WS}, s{sKO} offen offset:{1024*i} sc1" for i in range(4)]
        if hd == 0:
            L += [f"s_add_u32 s30, s{sRB}, 1", "s_and_b32 s30, s30, 7", "s_lshl_b32 s30, s30, 14", f"s_lshl_b32 s29, s{sG}, 12", "s_add_u32 s30, s30, s29", "s_mov_b32 m0, s30", f"s_add_u32 s30, s30, s{sVB}"]
            L += [f"buffer_load_dwordx4 {vr(vK)}, {WS}, s30 offen offset:{1024*i} sc1 lds" for i in range(4)]
        return L
    for j in range(8):
        K0 = KO + 4 * (j & 1); K1 = (KO + 4 * ((j + 1) & 1)) if j < 7 else KR
        V0 = VR + 8 * (j & 1); V1 = VR + 8 * ((j + 1) & 1)
        exA = {}; exB = {}
        pre = []
        for hd in (0, 1):
            tf, tp, tc = sy[hd]
            L = []
            if j == tf: L += publish(hd)
            if j == tp: L += [f"s_add_u32 s29, s{sRB}, 1", "s_and_b32 s29, s29, 7", "s_lshl_b32 s29, s29, 7", f"v_mov_b32 {vr(vT+1)}, s29"] + poll1
            if j == tc: L += fetch(hd)
            if hd == 1 and j == up and up != down: L += ["s_setprio 1"]
            if L: pre += only(hd, f"own_skip{j}_{hd}", L)
        if j == down and up != down: pre += ["s_setprio 0"]
        late = opt.get("latebar", 1)
        if j == 7:
            if not late: pre += ["s_waitcnt vmcnt(0)", "s_barrier"] + ([] if opt.get("loopst") else st_(opt, 9))
            pre += [f"v_add_u32 {vr(vVb)}, s{sVO}, {vr(vV)}", f"s_lshl_b32 s{sV0}, s{sW}, 11", f"s_add_u32 s{sV1}, s{sVB}, s{sV0}"]
            if late: add(exB, pos[1], ["s_waitcnt vmcnt(3)"])
        if opt.get("tilest"):
            i = [1, 2, 3, 4, 5, 11, 12, 13][j]
            pre = [f"s_memtime s[{60+2*i}:{61+2*i}]"] + pre
        add(exA, 0, pre)
        rd = []
        if j < 7: rd += [f"ds_read_b128 {vr(K1,4)}, {vr(vKl)} offset:{1024*(j+1)}"]
        vp = min(vpos, 8) if j < 7 else vpos
        if not (late and j == 7): add(exA, vp, rd + vread(V1, (j + 1) * 2048 if j < 7 else 0))
        if j == 0 or j == 7: add(exA, pos[2], ["s_waitcnt lgkmcnt(3)" if (j == 0 and vp < pos[2]) else "s_waitcnt lgkmcnt(0)"])
        if j < 7: add(exB, pos[1], ["s_waitcnt lgkmcnt(0)"])
        if j == 7: add(exB, 14, adv())
        out += step(SX, SY, OA, OB, K0, QB, V0, V1 + 4, exA, pos)
        out += step(SY, SX, OB, OA, K1, QA, V0, V0 + 4, exB, pos)
    vm.ops = []
    return out

def wo_dma(r, vm):
    L = [f"s_mov_b32 m0, s{sST}"]
    for i in range(4):
        L += [f"s_add_u32 s41, s{sWB}, {r*65536 + i*15360}", f"buffer_load_dwordx4 {vr(vWs)}, {WW}, s41 offen offset:{1024*i} lds"]
    vm.issue(f"W{r}", 4)
    return L
def wo_read(r, sg):
    return [f"ds_read_b64_tr_b16 {vr(WO + ((2*r+sg)*2+jt)*4 + 2*u, 2)}, {vr(vWr+jt)} offset:{sg*2048 + u*512}" for jt in range(2) for u in range(2)]

def phase2(a, opt):
    t = vT
    L = ["s_waitcnt lgkmcnt(2)", qk(SX, KO, QA), "s_nop 7", "s_nop 3"] + ["s_nop 0"] * opt.get("shift", 0)
    vm = VM()
    L += ["; tiles 0..7: this workgroup's own keys (K from LDS); publish K/V, fetch the next block's"] + own_chunk(opt, vm) + st_(opt, 10) + ["; tiles 8..11: wait for the whole group's flags"]
    poll2 = [f"v_and_b32 {vr(vT+1)}, 0x380, {vr(vFl)}", f"buffer_load_dword {vr(vT)}, {vr(vT+1)}, {WS}, s{sFL} offen sc1"]
    first8 = (["s_waitcnt vmcnt(0)", "s_barrier"] + ([] if opt.get("loopst") else st_(opt, 9)) + vread(VR, 0)) if opt.get("latebar", 1) else []
    def p2(vm): vm.issue("P2"); return first8 + poll2
    roll = opt.get("roll", 0)
    def stage(b):
        h = {}
        if not roll: return h
        for j in (0, 2):
            r = 2 * b + j // 2
            h[(j, 'A', 1)] = lambda vm, r=r: wo_dma(r, vm)
            h[(j + 1, 'A', 6)] = lambda vm, r=r: vm.wait(f"W{r}") + wo_read(r, 0)
            h[(j + 1, 'A', 8)] = lambda vm, r=r: wo_read(r, 1)
        return h
    assert not roll
    L += body(opt, 8, vm, {(0, 'A', 0): p2})
    L += vm.wait("P2") + ptest(sNON, vT) + spin("all", poll2[1:], ptest(sNON, vT))
    if opt.get("inv") is not None:
        L += [f"s_cmp_lg_u32 s{sW}, {opt['inv']}", "s_cbranch_scc1 att_noinv", "buffer_inv sc1", "att_noinv:"]
    L += [f"s_add_u32 s29, s{sRB}, s{sW}", "s_cmp_lg_u32 s29, 0", "s_cbranch_scc1 att_noepoch", "s_mov_b64 exec, 1", f"v_mov_b32 {vr(t+2)}, 1024",
          f"buffer_store_dword {vr(vNon)}, {vr(t+2)}, {WS}, s{sFL} offen sc1", "s_mov_b64 exec, -1", "att_noepoch:"]
    L += ["; tiles 12..15: the remaining V blocks stream into LDS"]
    L += body(opt, 12, vm, {(0, 'A', 0): lambda vm: vdma(2, vm), (1, 'A', 0): lambda vm: vdma(3, vm) + vdma(4, vm), (2, 'A', 0): lambda vm: vdma(5, vm) + vdma(6, vm),
                            (3, 'A', 0): lambda vm: vm.wait("V2") + ["s_barrier"] + vdma(7, vm)})
    L += ["; tiles 16..19: wo towards L2; partners of the o exchange have marked their slots; are they all on this die?"]
    def wo_touch(vm):
        vm.issue("T")
        mem = [f"s_lshr_b32 s29, s{sHP}, 1", "s_and_b32 s29, s29, 1", "s_lshl_b32 s29, s29, 3", f"s_add_u32 s29, s29, s{sRB}"] if opt.get("map", 1) == 0 else \
              [f"s_and_b32 s29, s{sRB}, 1", "s_lshl_b32 s29, s29, 3", f"s_lshr_b32 s30, s{sHP}, 1", "s_add_u32 s29, s29, s30"]
        return mem + ["s_lshl_b32 s29, s29, 3", f"s_add_u32 s29, s29, s{sW}", "s_lshl_b32 s29, s29, 12",
                f"s_and_b32 s30, s{sHP}, 1", "s_lshl_b32 s30, s30, 9", "s_add_u32 s29, s29, s30",
                f"v_lshrrev_b32 {vr(t+2)}, 2, v0", f"v_lshlrev_b32 {vr(t+2)}, 10, {vr(t+2)}", f"v_and_b32 {vr(t+3)}, 3, v0", f"v_lshl_add_u32 {vr(t+2)}, {vr(t+3)}, 7, {vr(t+2)}",
                "s_mov_b64 exec, 0xffff", f"buffer_load_dword {vr(t+4)}, {vr(t+2)}, {WW}, s29 offen", "s_mov_b64 exec, -1"]
    poll3 = [f"buffer_load_dwordx2 {vr(vT,2)}, {vr(vFl)}, {WS}, s{sFL2} offen sc1"]
    def p3(vm): vm.issue("P3"); return poll3
    L += body(opt, 16, vm, {(0, 'B', 14): wo_touch, (0, 'A', 0): p3})
    L += vm.wait("P3") + ptest(sNON2, vT) + spin("mrk", poll3, ptest(sNON2, vT))
    L += [f"s_xor_b32 s29, s{sNON2}, s{sXCC}"] + ptest(29, vT + 1) + [f"s_cselect_b32 s{sFAST}, 1, 0"]
    L += [f"s_add_u32 s29, s{sHP}, s{sW}", "s_cmp_lg_u32 s29, 0", "s_cbranch_scc1 att_noepoch2", "s_mov_b64 exec, 1", f"v_mov_b32 {vr(t+2)}, 2048", f"v_mov_b32 {vr(t+3)}, s{sNON2}",
          f"buffer_store_dword {vr(t+3)}, {vr(t+2)}, {WS}, s{sFL2} offen sc1", "s_mov_b64 exec, -1", "att_noepoch2:"]
    L += ["s_barrier"]
    L += st_(opt, 9) if opt.get("loopst") else []
    prio = opt.get("prio", 2)
    if prio: L += [f"s_cmp_eq_u32 s{sHD}, 0", "s_cbranch_scc1 att_noprio", "s_setprio 1", "att_noprio:"]
    L += ["; tiles 20..63; wo fragments are staged through LDS into v4..v131 on the way"]
    w0 = opt.get("wo0", 0)
    for b in range(11):
        hk = {}
        r = b - w0
        if opt.get("nostage"): r = 99
        if 1 <= r <= 8:
            hk[(0, 'A', 0)] = lambda vm, r=r: vm.wait(f"W{r-1}") + wo_read(r - 1, 0)
            hk[(0, 'A', 7)] = lambda vm, r=r: wo_read(r - 1, 1)
        if 0 <= r < 8:
            hk[(1, 'A', 0)] = lambda vm, r=r: wo_dma(r, vm)
        if opt.get("idle") and b == 3: hk[(2, 'A', 0)] = lambda vm: ["s_barrier", f"s_sleep {opt['idle']}", "s_barrier"]
        if prio and b == 11 - prio: hk[(0, 'B', 0)] = lambda vm: ["s_setprio 0"]
        L += body(opt, 20 + 4 * b, vm, hk, last=(b == 10))
    L += st_(opt, 11)
    L += ["s_nop 1", smf(OB, VR + 12, SY + 8)]
    assert vm.ops == [], vm.ops
    emit(a, L)
    a(f"s_mov_b32 s29, {f32hex(2.0**-60)}\ns_mov_b32 s30, {f32hex(2.0**60)}\ns_mov_b32 s31, 0x7f800000")
    a(f"v_cmp_le_f32 s[58:59], s29, {vr(OA+8)}\nv_cmp_ge_f32 vcc, s30, {vr(OA+8)}")
    if opt.get("lean", 0):
        a(f"v_pk_mul_f32 {vr(t,2)}, {vr(OA,2)}, 0 op_sel_hi:[1,0]")
        for i in range(2, 8, 2): a(f"v_pk_fma_f32 {vr(t,2)}, {vr(OA+i,2)}, 0, {vr(t,2)} op_sel_hi:[1,0,1]")
        a(f"s_and_b64 s[58:59], s[58:59], vcc\ns_nop 3\nv_cmp_le_f32 vcc, s29, {vr(OB+8)}")
        for i in range(0, 8, 2): a(f"v_pk_fma_f32 {vr(t,2)}, {vr(OB+i,2)}, 0, {vr(t,2)} op_sel_hi:[1,0,1]")
        a("s_and_b64 s[58:59], s[58:59], vcc")
        a(f"v_cmp_ge_f32 vcc, s30, {vr(OB+8)}\ns_mov_b32 s{sCNT}, 0\ns_nop 0\ns_and_b64 s[58:59], s[58:59], vcc")
        a(f"v_cmp_o_f32 vcc, {vr(t)}, {vr(t+1)}\ns_nop 1\ns_and_b64 s[58:59], s[58:59], vcc")
    else:
        a(f"v_add_f32 {vr(t)}, abs({vr(OA)}), abs({vr(OA+1)})")
        for i in range(2, 8): a(f"v_add_f32 {vr(t)}, {vr(t)}, abs({vr(OA+i)})")
        a("s_and_b64 s[58:59], s[58:59], vcc")
        a(f"v_cmp_le_f32 vcc, s29, {vr(OB+8)}")
        for i in range(8): a(f"v_add_f32 {vr(t)}, {vr(t)}, abs({vr(OB+i)})")
        a("s_and_b64 s[58:59], s[58:59], vcc")
        a(f"v_cmp_ge_f32 vcc, s30, {vr(OB+8)}\ns_nop 1\ns_and_b64 s[58:59], s[58:59], vcc")
        a(f"v_cmp_gt_f32 vcc, s31, {vr(t)}\ns_nop 1\ns_and_b64 s[58:59], s[58:59], vcc")
    a("s_cmp_eq_u64 s[58:59], -1")
    if opt.get("forcefb"): a("s_branch att_fallback")
    a("s_cbranch_scc0 att_fallback")
    a.label("att_finish")
    a(f"v_rcp_f32 {vr(t)}, {vr(OA+8)}\nv_rcp_f32 {vr(t+1)}, {vr(OB+8)}\ns_mov_b32 s29, -2")
    for n, (O, P, r, so) in enumerate(((OA, SX, t, sOA), (OB, SX + 4, t + 1, sOB))):
        if opt.get("lean", 0):
            for i in range(0, 8, 2): a(f"v_pk_mul_f32 {vr(O+i,2)}, {vr(O+i,2)}, {vr(t,2)} op_sel:[0,{n}] op_sel_hi:[1,{n}]")
        else:
            for i in range(8): a(f"v_mul_f32 {vr(O+i)}, {vr(O+i)}, {vr(r)}")
        for i in range(4): a(f"v_cvt_pk_bf16_f32 {vr(P+i)}, {vr(O+2*i)}, {vr(O+2*i+1)}")
        if opt.get("lean", 0): a(f"s_cmp_eq_u32 s{sCNT}, 0\ns_cbranch_scc1 att_nomin{n}")
        for i in range(4): a(f"v_min_u32 {vr(P+i)}, s29, {vr(P+i)}")
        if opt.get("lean", 0): a(f"att_nomin{n}:")
        st = f"buffer_store_dwordx4 {vr(P,4)}, {vr(vOs)}, {WS}, s{so} offen"
        if opt.get("fast", 1):
            a(f"s_cmp_lg_u32 s{sFAST}, 0\ns_cbranch_scc1 att_ofast{n}\n{st} sc1\ns_branch att_odone{n}\natt_ofast{n}:\n{st} {opt.get('fastf','')}\natt_odone{n}:")
        else:
            a(st + " sc1")
    if opt.get("clean"):
        for i in range(8): a(f"v_mov_b32 {vr(OB+i)}, {vr(SX+i)}")
    emit(a, st_(opt, 12))

def fallback(a, opt):
    t = vT
    a.label("att_fallback")
    a("s_waitcnt vmcnt(0) lgkmcnt(0)\ns_setprio 0")
    for nm, Q, O in (("a", QA, OA), ("b", QB, OB)):
        a(f"v_mov_b32 {vr(t)}, 0xff800000\ns_mov_b32 s{sCNT}, 0")
        a.label("fb_max" + nm)
        a(f"s_lshl_b32 s29, s{sCNT}, 10\ns_add_u32 s29, s29, s{sKB}")
        a(f"buffer_load_dwordx4 {vr(KR,4)}, {vr(vK)}, {WS}, s29 offen sc1\ns_waitcnt vmcnt(0)")
        a(qk(SX, KR, Q, "0")); a("s_nop 7\ns_nop 7")
        for i in range(0, 16, 2): a(f"v_max3_f32 {vr(t)}, {vr(t)}, {vr(SX+i)}, {vr(SX+i+1)}")
        a(f"s_add_u32 s{sCNT}, s{sCNT}, 1\ns_cmp_lt_u32 s{sCNT}, 64\ns_cbranch_scc1 fb_max{nm}")
        a(f"v_mov_b32 {vr(t+1)}, {vr(t)}\ns_nop 1\nv_permlane32_swap_b32 {vr(t)}, {vr(t+1)}")
        for i in range(16): a(f"v_min_f32 {vr(SY+i)}, -{vr(t)}, -{vr(t+1)}")
        for i in range(16): a(f"v_mov_b32 {vr(O+i)}, 0")
        a(f"s_mov_b32 s{sCNT}, 0")
        a.label("fb_sum" + nm)
        a(f"s_lshl_b32 s29, s{sCNT}, 10\ns_add_u32 s29, s29, s{sKB}\ns_lshl_b32 s30, s{sCNT}, 11\nv_add_u32 {vr(vVb)}, s30, {vr(vV)}")
        a(f"buffer_load_dwordx4 {vr(KR,4)}, {vr(vK)}, {WS}, s29 offen sc1")
        emit(a, vread(VR, 0))
        a("s_waitcnt vmcnt(0) lgkmcnt(0)")
        a(qk(SX, KR, Q, vr(SY, 16))); a("s_nop 7\ns_nop 7")
        for i in range(16): a(f"v_exp_f32 {vr(SX+i)}, {vr(SX+i)}")
        a("s_nop 1")
        a(smf(O, VR, SX)); a(smf(O, VR + 4, SX + 8))
        a(f"s_add_u32 s{sCNT}, s{sCNT}, 1\ns_cmp_lt_u32 s{sCNT}, 64\ns_cbranch_scc1 fb_sum{nm}")
        a("s_nop 7\ns_nop 7")
    a("s_branch att_finish")

def phase3(a, opt):
    t = vT
    G, F, acc = KR, VR, OA
    a(f"s_lshr_b32 s29, s{sHP}, 1\ns_lshl_b32 s30, s{sRB}, 3\ns_add_u32 s44, s29, s30")
    a(f"s_lshl_b32 s30, s{sP}, 6\ns_add_u32 s30, s30, s44\ns_lshl_b32 s30, s30, 15\ns_lshl_b32 s31, s{sW}, 12\ns_add_u32 s30, s30, s31\ns_add_u32 s45, s30, {WS_O}")
    gather = [f"buffer_load_dwordx4 {vr(G+4*i,4)}, {vr(vK)}, {WS}, s45 offen offset:{1024*i} sc1" for i in range(4)]
    emit(a, gather)
    a(f"v_add_u32 {vr(t+2)}, s{sST}, {vr(vK)}\nv_add_u32 {vr(t+3)}, {LDS_ST}, {vr(vK)}")
    a(f"v_and_b32 {vr(t+4)}, 15, v0\nv_lshlrev_b32 {vr(t+4)}, 11, {vr(t+4)}\nv_bfe_u32 {vr(t+1)}, v0, 4, 1\nv_lshl_add_u32 {vr(t+4)}, {vr(t+1)}, 5, {vr(t+4)}")
    a(f"v_lshrrev_b32 {vr(t+1)}, 5, v0\nv_lshl_add_u32 {vr(t+4)}, {vr(t+1)}, 4, {vr(t+4)}")
    a(f"s_lshl_b32 s29, s44, 16\ns_lshl_b32 s30, s{sP}, 10\ns_add_u32 s29, s29, s30\ns_add_u32 s52, s29, s{sWB}\ns_add_u32 s53, s52, 32768")
    test = [f"v_max3_u32 {vr(t)}, {vr(G)}, {vr(G+1)}, {vr(G+2)}"] + [f"v_max3_u32 {vr(t)}, {vr(t)}, {vr(G+i)}, {vr(G+i+1)}" for i in range(3, 15, 2)]
    test += [f"v_max_u32 {vr(t)}, {vr(t)}, {vr(G+15)}", f"v_cmp_ne_u32 vcc, -1, {vr(t)}", "s_nop 1", "s_cmp_eq_u64 vcc, -1"]
    emit(a, ["s_waitcnt vmcnt(0)"] + st_(opt, 13) + test + spin("prj", gather, test, opt.get("psleep", 2)))
    emit(a, st_(opt, 2))
    for i in range(4): a(f"ds_write_b128 {vr(t+2)}, {vr(G+4*i,4)} offset:{1024*i}")
    a("s_waitcnt lgkmcnt(0)\ns_barrier")
    if opt.get("wb"):
        m = {1: f"s_lshr_b32 s29, s2, 3\ns_add_u32 s29, s29, s{sW}", 2: f"s_mov_b32 s29, s{sW}", 3: f"s_and_b32 s29, s{sHP}, 15\ns_add_u32 s29, s29, s{sW}"}[opt["wb"]]
        a(m + "\ns_cmp_lg_u32 s29, 0\ns_cbranch_scc1 prj_nowb\nbuffer_wbl2 sc1\nprj_nowb:")
    if opt.get("tailst"): a("s_memrealtime s[68:69]")
    pv = opt.get("pv", 2)
    P = SX
    def finish(sub):
        L = [f"v_cvt_pk_bf16_f32 {vr(P+4*sub+2*jt+i)}, {vr(acc+8*sub+4*jt+2*i)}, {vr(acc+8*sub+4*jt+2*i+1)}" for jt in range(2) for i in range(2)]
        L += ["s_nop 1", f"v_permlane16_swap_b32 {vr(P+4*sub)}, {vr(P+4*sub+2)}", f"v_permlane16_swap_b32 {vr(P+4*sub+1)}, {vr(P+4*sub+3)}",
              f"buffer_store_dwordx4 {vr(P+4*sub,4)}, {vr(t+4)}, s[{SRD_O}:{SRD_O+3}], s{52+sub} offen sc1"]
        return L
    if pv == 1:
        FR = (VR, VR + 8, SY, SY + 8, KR, KR + 8, OB, OB + 8)
        Fr2 = lambda n: FR[n & 7]
        rd = lambda n: [f"ds_read_b128 {vr(Fr2(n)+4*sub,4)}, {vr(t+3)} offset:{n*2048 + sub*1024}" for sub in range(2)]
        for n in range(6): emit(a, rd(n))
        for n in range(0, 16, 2):
            a(f"s_waitcnt lgkmcnt({min(8, 2*(14-n))})")
            R = (rd(n + 6) + rd(n + 7)) if n + 6 < 16 else []
            k = 0
            for m in (n, n + 1):
                for sub in range(2):
                    for jt in range(2):
                        a(m16(acc + 8*sub + 4*jt, WO + (2*m+jt)*4, Fr2(m) + 4*sub, m == 0))
                        if k % 2 == 1 and R: a(R.pop(0))
                        k += 1
        if opt.get("tailst"): a("s_memrealtime s[70:71]")
        a("s_nop 7")
        emit(a, finish(0) + finish(1))
    else:
        FR = [VR + 4*i for i in range(4)] + [SY + 4*i for i in range(4)] + [KR + 4*i for i in range(4)] + [OB + 4*i for i in range(4)]
        rd = lambda q: f"ds_read_b128 {vr(FR[q & 15],4)}, {vr(t+3)} offset:{(q & 15)*2048 + (q >> 4)*1024}"
        for q in range(12): a(rd(q))
        fin0 = []
        for q0 in range(0, 32, 4):
            a(f"s_waitcnt lgkmcnt({min(8, 28 - q0)})")
            R = [rd(q) for q in range(q0 + 12, min(q0 + 16, 32))]
            if q0 == 24: fin0 = finish(0)
            for q in range(q0, q0 + 4):
                sub, m = q >> 4, q & 15
                for jt in range(2): a(m16(acc + 8*sub + 4*jt, WO + (2*m+jt)*4, FR[q & 15], m == 0))
                if R: a(R.pop(0))
                emit(a, fin0[:2]); fin0 = fin0[2:]
        if opt.get("tailst"): a("s_memrealtime s[70:71]")
        a("s_nop 7")
        emit(a, finish(1))
    emit(a, st_(opt, 3))

def kd(name, vgpr):
    return f""".amdhsa_kernel {name}
  .amdhsa_next_free_vgpr {vgpr}
  .amdhsa_next_free_sgpr 102
  .amdhsa_accum_offset {vgpr}
  .amdhsa_group_segment_fixed_size 0
  .amdhsa_kernarg_size 72
  .amdhsa_user_sgpr_count 2
  .amdhsa_user_sgpr_kernarg_segment_ptr 1
  .amdhsa_system_sgpr_workgroup_id_x 1
  .amdhsa_float_denorm_mode_32 3
.end_amdhsa_kernel
"""

DOC = """;
; Generated by my own script (register maps, counted waits and wait states are derived there).
"""

def build(opt):
    ref = open("cdna_kernels/" + NAME + ".s.ref").read().split("\n")
    hdr = [l for l in ref if l.startswith(";") and "@launch" not in l]
    out = "\n".join(hdr) + "\n; @launch grid=(256,1,1) block=(512,1,1) lds=163840\n" + DOC
    a = Asm()
    kn = NAME + "_kernel"
    a(f".globl {kn}\n.p2align 8\n.type {kn},@function")
    a.label(kn)
    if opt.get("stamp"):
        a("s_memrealtime s[88:89]"); emit(a, st_(opt, 0))
    a("; ---- ids, pointers ----"); prologue(a, kn, opt)
    a("; ==== phase 1: QKV projection ===="); phase1(a, opt)
    a("; ==== phase 2: attention ===="); phase2(a, opt)
    a("; ==== phase 3: output projection ===="); phase3(a, opt)
    errs = check_linear(a.lines, "main")
    dump_stamps(a, opt)
    a.label(kn + "_end")
    a("s_endpgm")
    n0 = len(a.lines)
    fallback(a, opt)
    a("code_end:")
    errs += check_linear(a.lines[n0:], "fallback")
    for e in errs[:8]: print("HAZARD", len(errs), e, file=sys.stderr)
    out += '.amdgcn_target "amdgcn-amd-amdhsa--gfx950"\n.text\n' + a.text()
    out += '.section .rodata,"a"\n.p2align 6\n' + kd(kn, 256)
    return out

if __name__ == "__main__":
    import json
    opt = json.loads(sys.argv[2]) if len(sys.argv) > 2 else {}
    open(sys.argv[1], "w").write(build(opt))
```

```python
import sys, math, struct
from asmlib import Asm, vr, sr, check_linear

NAME = "concat_heads__mha_block__softmax_full_mha__prompt"
WS_K, WS_V, WS_O = 0, 4 << 20, 8 << 20
WS_F = 12 << 20
WS_S = 13 << 20
WS_SIZE = 14 << 20
QSCALE = 0.25 * math.log2(math.e)
LDS_W, LDS_K, LDS_C, LDS_ST = 98304, 131072, 147456, 131072

def f32hex(x): return "0x%08x" % struct.unpack("<I", struct.pack("<f", x))[0]

sW = 3
sP, sHP, sRB, sHD, sG = 24, 25, 26, 27, 28
SRD_X, SRD_W, SRD_WS, SRD_O = 8, 12, 16, 20
WS = f"s[{SRD_WS}:{SRD_WS+3}]"; WW = f"s[{SRD_W}:{SRD_W+3}]"; XX = f"s[{SRD_X}:{SRD_X+3}]"
sFL2, sNON2 = 38, 39
sKB, sT0, sFL, sNON, sKO, sVO, sTO, sKS, sCNT, sVB = 48, 49, 50, 51, 52, 53, 54, 55, 56, 57
sOA, sOB, sST, sWB = 4, 5, 6, 7
sSPIN, sV0, sV1 = 98, 99, 100
sXCC, sFAST = 101, 43
WO = 4
vXo, vWo, vXa, vWa, vTch = 4, 8, 10, 14, 16
F1 = 20; aQ, aK, aV = 76, 92, 108
KO = 4
vKl, vCn, vKp, vVa, vKw = 124, 125, 126, 127, 128
QA, QB, SX, SY, OA, OB, KR, VR = 132, 136, 140, 156, 172, 188, 204, 220
IDX, vK, vV, vVb, vFl, vNon, vOs, vWs, vWr = 236, 237, 238, 239, 240, 241, 242, 243, 244
vT = 248

class VM:
    def __init__(self): self.ops = []
    def issue(self, tag, n=1): self.ops += [tag] * n
    def wait(self, tag):
        if tag not in self.ops: return []
        k = len(self.ops) - 1 - max(i for i, x in enumerate(self.ops) if x == tag)
        self.ops = self.ops[len(self.ops) - k:] if k else []
        return [f"s_waitcnt vmcnt({k})"]

def srd(a, d, lo, size):
    a(f"s_mov_b32 s{d}, s{lo}\ns_mov_b32 s{d+1}, s{lo+1}\ns_mov_b32 s{d+2}, {size}\ns_mov_b32 s{d+3}, 0x20000")
def st_(opt, i):
    if not opt.get("stamp") or i not in opt.get("stamps", range(14)): return []
    return [f"{'s_memrealtime' if opt.get('abs') else 's_memtime'} s[{60+2*i}:{61+2*i}]"]
def emit(a, L):
    for x in L: a(x)
def m16(d, A, B, first=False):
    return f"v_mfma_f32_16x16x32_bf16 {vr(d,4)}, {vr(A,4)}, {vr(B,4)}, {'0' if first else vr(d,4)}"
def lcg(s): return f"s_mul_i32 s{s}, s{s}, 1664525\ns_add_u32 s{s}, s{s}, 1013904223"

def dump_stamps(a, opt):
    if not opt.get("stamp"): return
    a("s_memrealtime s[90:91]\ns_waitcnt lgkmcnt(0)")
    a(f"s_lshl_b32 s92, s2, 3\ns_add_u32 s92, s92, s{sW}\ns_lshl_b32 s92, s92, 6\ns_add_u32 s92, s92, {WS_S}\nv_mov_b32 v2, s92")
    for i in range(1, 14):
        a(f"s_sub_u32 s93, s{60+2*i}, {0 if opt.get('abs') else 's60'}\nv_mov_b32 v3, s93\nbuffer_store_dword v3, v2, {WS}, 0 offen offset:{4*i}")
    a(f"v_mov_b32 v3, s88\nbuffer_store_dword v3, v2, {WS}, 0 offen offset:56")
    a(f"v_mov_b32 v3, s90\nbuffer_store_dword v3, v2, {WS}, 0 offen offset:60")

def prologue(a, lab, opt):
    a(f"s_cmp_ge_u32 s2, 256\ns_cbranch_scc1 {lab}_end")
    a("s_and_b32 s29, s2, 7\ns_lshr_b32 s30, s2, 3")
    a(f"s_lshr_b32 s{sP}, s29, 2\ns_mul_i32 s31, s{sP}, 24")
    if opt.get("kl", 0) == 0:
        a("s_load_dwordx4 s[4:7], s[0:1], s31\ns_load_dwordx2 s[36:37], s[0:1], 64\ns_add_u32 s31, s31, 16")
        a("s_load_dwordx2 s[32:33], s[0:1], s31\ns_load_dwordx2 s[34:35], s[0:1], 48")
    else:
        a("s_load_dwordx4 s[4:7], s[0:1], s31")
    a("v_lshrrev_b32 v1, 6, v0\ns_and_b32 s29, s29, 3\ns_lshl_b32 s29, s29, 2")
    a(f"v_readfirstlane_b32 s{sW}, v1")
    if opt.get("map", 1) == 0:
        a(f"s_and_b32 s{sRB}, s30, 7\ns_lshr_b32 s30, s30, 3\ns_add_u32 s{sHP}, s29, s30")
    else:
        a(f"s_and_b32 s{sHP}, s30, 15\ns_lshr_b32 s30, s30, 4\ns_lshr_b32 s29, s29, 1\ns_add_u32 s{sRB}, s29, s30")
    a("v_and_b32 v0, 63, v0")
    a(f"s_lshr_b32 s{sHD}, s{sW}, 2\ns_and_b32 s{sG}, s{sW}, 3")

def early_constants(a, opt):
    t = vT
    a(f"v_and_b32 {vr(t)}, 0x23, v0\nv_and_b32 {vr(t+1)}, 12, v0\nv_lshl_or_b32 {vr(t)}, {vr(t+1)}, 1, {vr(t)}")
    a(f"v_and_b32 {vr(t+1)}, 16, v0\nv_lshrrev_b32 {vr(t+1)}, 2, {vr(t+1)}\nv_or_b32 {vr(t)}, {vr(t)}, {vr(t+1)}\nv_lshlrev_b32 {vr(vKp)}, 4, {vr(t)}")
    a(f"v_lshrrev_b32 {vr(t+1)}, 4, v0\nv_lshlrev_b32 {vr(t+1)}, 9, {vr(t+1)}\nv_and_b32 {vr(t+2)}, 15, v0\nv_lshl_add_u32 {vr(t+1)}, {vr(t+2)}, 4, {vr(t+1)}")
    a(f"s_lshl_b32 s30, s{sHD}, 8\ns_lshl_b32 s31, s{sT0}, 11\ns_add_u32 s30, s30, s31\nv_add_u32 {vr(vVa)}, s30, {vr(t+1)}")
    a(f"s_lshl_b32 s30, s{sT0}, 10\ns_add_u32 s{sKS}, s30, s{sKB}")
    a(f"s_lshl_b32 s30, s{sHD}, 13\ns_lshl_b32 s31, s{sG}, 11\ns_add_u32 s30, s30, s31\ns_add_u32 s30, s30, {LDS_K}\nv_add_u32 {vr(vKw)}, s30, {vr(vKp)}")
    a(f"v_mov_b32 {vr(IDX)}, 0xdddddddd\nv_lshlrev_b32 {vr(vK)}, 4, v0")
    a(f"v_and_b32 {vr(t)}, 27, v0\nv_cmp_eq_u32 vcc, 16, {vr(t)}\nv_mov_b32 {vr(t+1)}, 0x3f803f80\nv_mov_b32 {vr(t+2)}, 0")
    a(f"v_cndmask_b32 {vr(VR)}, {vr(t+2)}, {vr(t+1)}, vcc\nv_cndmask_b32 {vr(VR+1)}, {vr(t+2)}, {vr(t+1)}, vcc")
    for i in range(2, 16, 2): a(f"v_pk_mov_b32 {vr(VR+i,2)}, {vr(VR,2)}, {vr(VR,2)} op_sel:[0,1]")
    a(f"v_mov_b32 {vr(OA)}, 0\nv_mov_b32 {vr(OA+1)}, 0")
    for i in range(2, 32, 2): a(f"v_pk_mov_b32 {vr(OA+i,2)}, {vr(OA,2)}, {vr(OA,2)} op_sel:[0,1]")
    for i in range(8, 16, 2): a(f"v_pk_mov_b32 {vr(SY+i,2)}, {vr(OA,2)}, {vr(OA,2)} op_sel:[0,1]")
    a(f"v_lshrrev_b32 {vr(t+3)}, 5, v0\nv_and_b32 {vr(t+1)}, 15, v0\nv_lshlrev_b32 {vr(t+1)}, 4, {vr(t+1)}\nv_lshl_add_u32 {vr(t)}, {vr(t+3)}, 9, {vr(t+1)}")
    a(f"s_lshl_b32 s29, s{sHD}, 8\nv_add_u32 {vr(vV)}, s29, {vr(t)}")
    a(f"s_lshl_b32 s29, s{sRB}, 14\nv_add_u32 {vr(vVb)}, s29, {vr(vV)}")
    a(f"s_lshl_b32 s29, s{sHD}, 13\ns_add_u32 s29, s29, {LDS_K}\nv_add_u32 {vr(vKl)}, s29, {vr(vK)}")
    a(f"v_and_b32 {vr(vFl)}, 15, v0\nv_lshlrev_b32 {vr(vFl)}, 7, {vr(vFl)}")
    a(f"v_lshl_add_u32 {vr(vOs)}, {vr(t+3)}, 8, {vr(t+1)}\nv_and_b32 {vr(t)}, 16, v0\nv_lshl_add_u32 {vr(vOs)}, {vr(t)}, 6, {vr(vOs)}")
    a(f"s_lshl_b32 s30, s{sP}, 6\ns_add_u32 s30, s30, s{sT0}\ns_lshl_b32 s30, s30, 15\ns_lshl_b32 s29, s{sHP}, 11\ns_add_u32 s30, s30, s29")
    a(f"s_lshl_b32 s29, s{sHD}, 9\ns_add_u32 s30, s30, s29\ns_add_u32 s{sOA}, s30, {WS_O}\ns_add_u32 s{sOB}, s{sOA}, 32768")
    a(f"v_bfe_u32 {vr(t)}, v0, 4, 1\nv_lshlrev_b32 {vr(t+1)}, 1, {vr(t)}\nv_xor_b32 {vr(t+1)}, {vr(t+1)}, v0\nv_and_b32 {vr(t+1)}, 3, {vr(t+1)}\nv_lshlrev_b32 {vr(t+1)}, 4, {vr(t+1)}")
    a(f"v_lshrrev_b32 {vr(t+2)}, 2, v0\nv_lshl_add_u32 {vr(vWs)}, {vr(t+2)}, 10, {vr(t+1)}")
    a(f"s_and_b32 s29, s{sHP}, 1\ns_lshl_b32 s29, s29, 9\ns_lshl_b32 s30, s{sW}, 6\ns_add_u32 s{sWB}, s29, s30")
    a(f"s_lshl_b32 s{sST}, s{sW}, 12\ns_add_u32 s{sST}, s{sST}, {LDS_ST}")
    a(f"v_lshlrev_b32 {vr(t+1)}, 10, {vr(t+3)}\nv_mul_u32_u24 {vr(t)}, 288, {vr(t)}\nv_add3_u32 {vr(t+1)}, {vr(t+1)}, {vr(t)}, s{sST}")
    a(f"v_bfe_u32 {vr(t)}, v0, 2, 2\nv_lshl_add_u32 {vr(t+1)}, {vr(t)}, 6, {vr(t+1)}\nv_and_b32 {vr(t)}, 3, v0\nv_lshl_add_u32 {vr(vWr)}, {vr(t)}, 3, {vr(t+1)}\nv_xor_b32 {vr(vWr+1)}, 32, {vr(vWr)}")
    a(f"s_lshl_b32 s{sTO}, s{sRB}, 13\ns_add_u32 s{sTO}, s{sTO}, 4096")
    emit(a, adv())
    a(f"v_mov_b32 {vr(vCn)}, {LDS_C}\ns_cmp_lg_u32 s{sW}, 0\ns_cbranch_scc1 early_done\nds_write_b32 {vr(vCn)}, {vr(OA)}\nearly_done:")
    for i in range(4): a(f"v_mov_b32 {vr(KR+i)}, -1")

def phase1(a, opt):
    t = vT
    vm = VM()
    a(f"s_lshl_b32 s29, s{sRB}, 8\ns_lshl_b32 s30, s{sW}, 5\ns_add_u32 s29, s29, s30\ns_lshl_b32 s29, s29, 10")
    if opt.get("emu4"): a(f"s_and_b32 s30, s{sHP}, 1\ns_lshl_b32 s30, s30, 14\ns_add_u32 s29, s29, s30")
    a(f"v_lshrrev_b32 {vr(t)}, 4, v0\nv_and_b32 {vr(t+1)}, 7, v0\nv_xor_b32 {vr(t)}, {vr(t)}, {vr(t+1)}\nv_lshlrev_b32 {vr(t)}, 4, {vr(t)}")
    a(f"v_lshrrev_b32 {vr(t+1)}, 3, v0\nv_lshl_add_u32 {vr(t+1)}, {vr(t+1)}, 10, s29")
    a(f"v_xor_b32 {vr(t+2)}, 64, {vr(t)}")
    a(f"v_add_u32 {vr(vXo)}, {vr(t+1)}, {vr(t)}")
    a(f"v_add_u32 {vr(vXo+1)}, {vr(t+1)}, {vr(t+2)}\nv_add_u32 {vr(vXo+1)}, 7168, {vr(vXo+1)}")
    a(f"v_add_u32 {vr(vXo+2)}, 14336, {vr(vXo)}\nv_add_u32 {vr(vXo+3)}, 14336, {vr(vXo+1)}")
    if opt.get("map", 1) == 0:
        a(f"s_add_u32 s40, s{sHP}, s{sRB}\ns_lshl_b32 s40, s40, 1")
    else:
        a(f"s_lshr_b32 s40, s{sHP}, 1\ns_add_u32 s40, s40, s{sRB}\ns_lshl_b32 s40, s40, 1\ns_and_b32 s41, s{sHP}, 1\ns_add_u32 s40, s40, s41\ns_lshl_b32 s40, s40, 1")
        if opt.get("odd"): a(f"s_lshr_b32 s41, s{sHP}, {opt['odd']}\ns_and_b32 s41, s41, 1\ns_add_u32 s40, s40, s41")
    if opt.get("starts"):
        tbl = sum(v << (8 * i) for i, v in enumerate(opt["starts"]))
        a(f"s_and_b32 s40, s40, 6\ns_lshl_b32 s40, s40, 2\ns_lshr_b32 s40, {tbl}, s40\ns_and_b32 s40, s40, 7")
    fl = opt.get("flip", 0)
    if fl:
        a(f"s_lshr_b32 s29, s{sHP}, {1 + fl}\ns_and_b32 s29, s29, 1\ns_sub_u32 s{sV0}, s40, s29\ns_add_u32 s40, s40, s29")
    kreg = lambda c: (sV0 if (fl and c & 1) else 40)
    a(f"s_lshl_b32 s42, s{sW}, 12\ns_mul_i32 s43, s{sW}, 1536\ns_add_u32 s43, s43, {LDS_W}\ns_mov_b32 s46, -1\ns_mov_b32 s47, 0")
    def wsetup():
        a(f"s_mul_i32 s29, s{sW}, 96\ns_lshl_b32 s30, s{sHP}, 6")
        for i in range(2):
            d = vWo + i
            a(f"v_add_u32 {vr(t)}, s29, v0")
            if i: a(f"v_add_u32 {vr(t)}, 64, {vr(t)}")
            a(f"v_mul_u32_u24 {vr(t+1)}, 1366, {vr(t)}\nv_lshrrev_b32 {vr(t+1)}, 16, {vr(t+1)}")
            a(f"v_mul_u32_u24 {vr(t+2)}, 48, {vr(t+1)}\nv_sub_u32 {vr(t+2)}, {vr(t)}, {vr(t+2)}")
            a(f"v_bfe_u32 {vr(t+3)}, {vr(t+2)}, 2, 2\nv_lshl_add_u32 {vr(t+3)}, {vr(t+1)}, 2, {vr(t+3)}")
            a(f"v_mul_u32_u24 {vr(d)}, 3072, {vr(t+3)}")
            a(f"v_lshrrev_b32 {vr(t+3)}, 4, {vr(t+2)}\nv_lshl_add_u32 {vr(d)}, {vr(t+3)}, 10, {vr(d)}")
            a(f"v_and_b32 {vr(t+1)}, 2, {vr(t+1)}\nv_xor_b32 {vr(t+2)}, {vr(t+2)}, {vr(t+1)}\nv_and_b32 {vr(t+2)}, 3, {vr(t+2)}")
            a(f"v_lshl_add_u32 {vr(d)}, {vr(t+2)}, 4, {vr(d)}")
            if i: a(f"s_sub_u32 s30, s30, 1024")
            a(f"v_add_u32 {vr(d)}, s30, {vr(d)}")
    if opt.get("emu4"):
        def wsetup():
            a(f"s_mul_i32 s29, s{sW}, 192\ns_lshr_b32 s30, s{sHP}, 1\ns_lshl_b32 s30, s30, 7")
            for i, d in enumerate((vWo, vWo + 1, vTch)):
                a(f"v_add_u32 {vr(t)}, s29, v0\nv_add_u32 {vr(t)}, {64*i}, {vr(t)}\nv_mul_u32_u24 {vr(t+1)}, 2731, {vr(t)}\nv_lshrrev_b32 {vr(t+1)}, 16, {vr(t+1)}")
                a(f"v_mul_u32_u24 {vr(t+2)}, 24, {vr(t+1)}\nv_sub_u32 {vr(t+2)}, {vr(t)}, {vr(t+2)}\nv_mul_u32_u24 {vr(d)}, 3072, {vr(t+1)}")
                a(f"v_lshrrev_b32 {vr(t+3)}, 3, {vr(t+2)}\nv_lshl_add_u32 {vr(d)}, {vr(t+3)}, 10, {vr(d)}\nv_and_b32 {vr(t+2)}, 7, {vr(t+2)}\nv_lshl_add_u32 {vr(d)}, {vr(t+2)}, 4, {vr(d)}")
                a(f"v_add_u32 {vr(d)}, s30, {vr(d)}\nv_subrev_u32 {vr(d)}, {1024*i}, {vr(d)}")
    order = opt.get("order", 0)
    if order in (0, 3, 4): wsetup()
    a("s_waitcnt lgkmcnt(0)")
    emit(a, st_(opt, 1))
    srd(a, SRD_X, 4, 0x200000); srd(a, SRD_W, 6, 0x180000)
    def dmax(c):
        L = [f"s_add_u32 s41, s{kreg(c)}, {c}\ns_and_b32 s41, s41, 7\ns_add_u32 m0, s42, {(c%3)*32768}\ns_lshl_b32 s44, s41, 7"]
        nx = 2 if opt.get("emu4") else 4
        for i in range(nx): L.append(f"buffer_load_dwordx4 {vr(vXo+i)}, {XX}, s44 offen offset:{1024*i} lds")
        vm.issue(f"x{c}", nx)
        return L
    def dmaw(c):
        L = [f"s_add_u32 s41, s{kreg(c)}, {c}\ns_and_b32 s41, s41, 7\ns_add_u32 m0, s43, {(c%3)*12288}\ns_mul_i32 s45, s41, 196608\nbuffer_load_dwordx4 {vr(vWo)}, {WW}, s45 offen lds",
             f"s_mov_b64 exec, s[46:47]\nbuffer_load_dwordx4 {vr(vWo+1)}, {WW}, s45 offen offset:1024 lds\ns_mov_b64 exec, -1"]
        if opt.get("emu4"):
            L = [L[0]] + [f"buffer_load_dwordx4 {vr(vWo+1)}, {WW}, s45 offen offset:1024 lds", f"buffer_load_dwordx4 {vr(vTch)}, {WW}, s45 offen offset:2048 lds"]
            vm.issue(f"w{c}", 1)
        vm.issue(f"w{c}", 2)
        return L
    def landed(c):
        tags = [x for x in (f"x{c}", f"w{c}") if x in vm.ops]
        if not tags: return []
        return vm.wait(max(tags, key=lambda x: max(i for i, y in enumerate(vm.ops) if y == x)))
    if opt.get("xtouch"):
        a(f"s_lshl_b32 s29, s{sRB}, 18\ns_lshl_b32 s30, s{sHP}, 14\ns_add_u32 s29, s29, s30\ns_lshl_b32 s30, s{sW}, 11\ns_add_u32 s29, s29, s30")
        a(f"v_lshlrev_b32 {vr(vTch)}, 7, v0\ns_mov_b64 exec, 0xffff\nbuffer_load_dword {vr(vTch+1)}, {vr(vTch)}, {XX}, s29 offen\ns_mov_b64 exec, -1"); vm.issue("T")
        xo = opt["xtouch"]
        if xo == 1: emit(a, dmaw(0) + dmaw(1) + dmax(0) + dmax(1))
        elif xo == 2: emit(a, dmaw(0) + dmax(0) + dmaw(1) + dmax(1))
        else: emit(a, dmax(0) + dmaw(0) + dmax(1) + dmaw(1))
    elif order == 3:
        emit(a, dmaw(0) + dmaw(1) + dmax(0) + dmax(1))
    elif order == 4:
        emit(a, dmaw(0) + dmax(0) + dmaw(1) + dmax(1))
    elif order == 0:
        emit(a, dmax(0) + dmaw(0) + dmax(1) + dmaw(1))
    else:
        emit(a, dmax(0)); wsetup()
        if order == 2: emit(a, dmaw(0))
    if opt.get("kl", 0):
        a(f"s_mul_i32 s31, s{sP}, 24\ns_add_u32 s31, s31, 16\ns_load_dwordx2 s[36:37], s[0:1], 64\ns_load_dwordx2 s[32:33], s[0:1], s31\ns_load_dwordx2 s[34:35], s[0:1], 48\ns_waitcnt lgkmcnt(0)")
    srd(a, SRD_WS, 36, WS_SIZE); srd(a, SRD_O, 34, 0x400000)
    a(f"s_lshl_b32 s30, s{sP}, 4\ns_add_u32 s30, s30, s{sHP}\ns_lshl_b32 s31, s30, 17")
    a(f"s_lshl_b32 s{sFL}, s30, 11\ns_add_u32 s{sFL}, s{sFL}, {WS_F}\ns_add_u32 s29, s{sFL}, 1024\ns_load_dword s{sNON}, s[36:37], s29")
    a(f"s_lshl_b32 s29, s{sP}, 3\ns_add_u32 s29, s29, s{sRB}\ns_lshl_b32 s29, s29, 12\ns_add_u32 s{sFL2}, s29, {WS_F + 0x10000}\ns_add_u32 s29, s{sFL2}, 2048\ns_load_dword s{sNON2}, s[36:37], s29")
    a(f"s_lshl_b32 s{sKB}, s{sHD}, 16\ns_add_u32 s{sKB}, s{sKB}, s31\ns_add_u32 s{sVB}, s31, {WS_V}")
    a(f"s_lshl_b32 s{sT0}, s{sRB}, 3\ns_lshl_b32 s29, s{sG}, 1\ns_add_u32 s{sT0}, s{sT0}, s29")
    a(f"v_bfe_u32 {vr(t)}, v0, 1, 3\nv_lshrrev_b32 {vr(t+1)}, 4, v0\nv_xor_b32 {vr(t)}, {vr(t)}, {vr(t+1)}\nv_lshlrev_b32 {vr(t)}, 4, {vr(t)}")
    a(f"v_and_b32 {vr(t+2)}, 15, v0\nv_lshl_add_u32 {vr(t)}, {vr(t+2)}, 7, {vr(t)}")
    a(f"s_lshl_b32 s29, s{sG}, 13\nv_add_u32 {vr(vXa)}, s29, {vr(t)}\nv_xor_b32 {vr(vXa+1)}, 64, {vr(vXa)}")
    a(f"v_add_u32 {vr(vXa+2)}, 0x10000, {vr(vXa)}\nv_add_u32 {vr(vXa+3)}, 0x10000, {vr(vXa+1)}")
    a(f"v_mul_u32_u24 {vr(t)}, 1536, {vr(t+1)}\nv_bfe_u32 {vr(t+2)}, v0, 2, 2\nv_lshl_add_u32 {vr(t)}, {vr(t+2)}, 6, {vr(t)}")
    a(f"v_and_b32 {vr(t+2)}, 3, v0\nv_lshl_add_u32 {vr(t)}, {vr(t+2)}, 3, {vr(t)}")
    a(f"v_xor_b32 {vr(t+1)}, s{sHD}, {vr(t+1)}\nv_and_b32 {vr(t+1)}, 1, {vr(t+1)}\nv_lshl_add_u32 {vr(t)}, {vr(t+1)}, 5, {vr(t)}")
    a(f"v_add_u32 {vr(vWa)}, {LDS_W}, {vr(t)}")
    if opt.get("warm"):
        a(f"s_lshr_b32 s29, s2, 3\ns_cmp_lg_u32 s29, 0\ns_cbranch_scc1 warm_done\ns_getpc_b64 s[58:59]\nwarm_pc:")
        a(f"s_lshl_b32 s29, s{sW}, 12\nv_lshlrev_b32 {vr(t)}, 6, v0\nv_add_u32 {vr(t)}, s29, {vr(t)}\nv_min_u32 {vr(t)}, code_end-warm_pc-4, {vr(t)}")
        a(f"global_load_dword {vr(t+7)}, {vr(t)}, s[58:59]\nwarm_done:")
    early_constants(a, opt)
    if opt.get("sentc", 6) == -1:
        emit(a, [f"buffer_store_dwordx4 {vr(KR,4)}, {vr(vOs)}, {WS}, s{so} offen sc1" for so in (sOA, sOB)]); vm.issue("S", 2)
    if order == 1: emit(a, dmaw(0) + dmax(1) + dmaw(1))
    if order == 2: emit(a, dmax(1) + dmaw(1))
    def reads(c, s, fs):
        if opt.get("nord"): return ["s_nop 0"] * 10
        st = c % 3
        F = F1 + 28 * fs
        xa = vXa + s + (2 if st == 2 else 0)
        xi = 32768 if st == 1 else 0
        wi = st * 12288 + s * 6144
        W = lambda seg, u: f"ds_read_b64_tr_b16 {vr(F+16+4*seg+2*u,2)}, {vr(vWa)} offset:{wi + u*768 + seg*256}"
        X = lambda ts: f"ds_read_b128 {vr(F+4*ts,4)}, {vr(xa)} offset:{xi + ts*2048}"
        return [W(0, 0), W(0, 1), X(0), W(1, 0), W(1, 1), X(1), W(2, 0), W(2, 1), X(2), X(3)]
    def mfmas(fs, first, kv_first=False):
        if opt.get("nomf"): return ["s_nop 0"] * 12
        F = F1 + 28 * fs
        Q = [m16(aQ+4*ts, F+16, F+4*ts, first) for ts in range(4)]
        K = [m16(aK+4*ts, F+20, F+4*ts, first) for ts in range(4)]
        V = [m16(aV+4*ts, F+4*ts, F+24, first) for ts in range(4)]
        if kv_first: return V + K + Q
        return [x for ts in range(4) for x in (Q[ts], K[ts], V[ts])]
    emit(a, landed(0)); a("s_waitcnt lgkmcnt(0)\ns_barrier")
    emit(a, st_(opt, 4))
    def p1_loop(dpos, vm_in):
        vm.ops = list(vm_in)
        def dma_for(c):
            D = (dmax(c + 2) + dmaw(c + 2)) if c + 2 < 8 else []
            if opt.get("nodma"): D = []; vm.ops = [x for x in vm.ops if x[1:] != str(c + 2)]
            if c == opt.get("sentc", 6):
                D = D + [f"buffer_store_dwordx4 {vr(KR,4)}, {vr(vOs)}, {WS}, s{so} offen sc1" for so in (sOA, sOB)]; vm.issue("S", 2)
            return D
        def spread(M, parts):
            slots = [[] for _ in M]
            for f, l, items in parts:
                k = 0
                for i in range(f, l + 1):
                    n = -(-(len(items) - k) // (l + 1 - i))
                    slots[i] += items[k:k+n]; k += n
            for m, sl in zip(M, slots):
                a(m); emit(a, sl)
        emit(a, reads(0, 0, 0))
        Dn = dma_for(0) if dpos == 1 else None
        if dpos == 1: emit(a, Dn)
        for c in range(8):
            M = mfmas(0, c == 0); X = reads(c, 1, 1)
            a("s_waitcnt lgkmcnt(0)")
            if dpos == 0: spread(M, [(0, 4, X), (5, 11, dma_for(c))])
            elif dpos == 2: spread(M, [(0, 4, dma_for(c)), (4, 8, X)])
            elif dpos == 3: spread(M, [(0, 6, dma_for(c)), (0, 9, X)])
            elif dpos == 4: spread(M, [(0, 4, X), (8, 11, dma_for(c))])
            elif dpos == 5: Dn = dma_for(c); spread(M, [(0, 4, X)])
            else: spread(M, [(0, 4, X)])
            M = mfmas(1, False, c == 7)
            a("s_waitcnt lgkmcnt(0)")
            if c < 7:
                nb = opt.get("nb", 3)
                if dpos == 5: nb = 6; spread(M[:nb], [(0, nb - 1, Dn)])
                else: emit(a, M[:nb])
                emit(a, landed(c + 1)); a("s_barrier")
                X = reads(c + 1, 0, 0)
                if dpos == 1: spread(M[nb:], [(0, 4, X), (2, 11 - nb, dma_for(c + 1))])
                else: spread(M[nb:], [(0, min(4, 11 - nb), X)])
            else:
                a("s_barrier")
                emit(a, M)

    dp = opt.get("dpos", 0)
    start = list(vm.ops)
    if isinstance(dp, int):
        p1_loop(dp, start)
    else:
        a(f"s_cmp_lg_u32 s{sHD}, 0\ns_cbranch_scc1 p1_hd1")
        n0 = len(a.lines)
        p1_loop(dp[0], start)
        a("s_branch p1_done\np1_hd1:")
        p1_loop(dp[1], start)
        a("p1_done:")
    emit(a, st_(opt, 5))
    KA, VA = 20, 28
    a(f"s_mov_b32 s29, {f32hex(QSCALE)}")
    a(lcg(sNON)); a(lcg(sNON2))
    a(f"s_getreg_b32 s{sXCC}, hwreg(HW_REG_XCC_ID, 0, 4)")
    a("s_mov_b32 s46, 0xffff\ns_mov_b32 s47, 0xffff")
    srd(a, SRD_W, 32, 0x80000)
    def qpart():
        for i in range(16): a(f"v_mul_f32 {vr(aQ+i)}, s29, {vr(aQ+i)}")
        for i in range(8): a(f"v_cvt_pk_bf16_f32 {vr(QA+i)}, {vr(aQ+2*i)}, {vr(aQ+2*i+1)}")
        a(f"v_mov_b32 {vr(vNon)}, s{sNON}\ns_nop 0")
        for Q in (QA, QB): a(f"v_permlane16_swap_b32 {vr(Q)}, {vr(Q+2)}\nv_permlane16_swap_b32 {vr(Q+1)}, {vr(Q+3)}")
    for ts in range(4):
        for i in range(2): a(f"v_cvt_pk_bf16_f32 {vr(VA+2*ts+i)}, {vr(aV+4*ts+2*i)}, {vr(aV+4*ts+2*i+1)}")
    for i in range(2): a(f"buffer_store_dwordx4 {vr(VA+4*i,4)}, {vr(vVa)}, {WS}, s{sVB} offen offset:{2048*i} sc1")
    for ts in range(4):
        for i in range(2): a(f"v_cvt_pk_bf16_f32 {vr(KA+2*ts+i)}, {vr(aK+4*ts+2*i)}, {vr(aK+4*ts+2*i+1)}")
    for i in range(2): a(f"ds_write_b128 {vr(vVa)}, {vr(VA+4*i,4)} offset:{2048*i}")
    for K in (KA, KA + 4): a(f"v_permlane16_swap_b32 {vr(K)}, {vr(K+2)}\nv_permlane16_swap_b32 {vr(K+1)}, {vr(K+3)}")
    for i in range(2): a(f"ds_write_b128 {vr(vKw)}, {vr(KA+4*i,4)} offset:{1024*i}")
    for i in range(2): a(f"buffer_store_dwordx4 {vr(KA+4*i,4)}, {vr(vKp)}, {WS}, s{sKS} offen offset:{1024*i} sc1")
    if opt.get("sentc", 6) == 8:
        emit(a, [f"buffer_store_dwordx4 {vr(KR,4)}, {vr(vOs)}, {WS}, s{so} offen sc1" for so in (sOA, sOB)])
    if not opt.get("qlate", 0): qpart()
    a("s_waitcnt lgkmcnt(0)\ns_barrier")
    emit(a, st_(opt, 6))
    emit(a, [f"ds_read_b128 {vr(KO,4)}, {vr(vKl)}"] + vread(VR, 0))
    if opt.get("qlate", 0): qpart()

def smf(o, v, b): return f"v_smfmac_f32_32x32x32_bf16 {vr(o,16)}, {vr(v,4)}, {vr(b,8)}, {vr(IDX)}"
CSTAND = "4.0"
def qk(d, k, q, c=None):
    c = CSTAND if c is None else c
    return f"v_mfma_f32_32x32x16_bf16 {vr(d,16)}, {vr(k,4)}, {vr(q,4)}, {c}"

def step(X, Y, Oc, Op, Kn, Qn, Va, Vprev, extra, pos):
    L = []
    for i in range(16):
        L += extra.get(i, [])
        if i == pos[0]: L.append(smf(Op, Vprev, Y + 8))
        if i == pos[1]: L.append(qk(Y, Kn, Qn))
        if i == pos[2]: L.append(smf(Oc, Va, X))
        L.append(f"v_exp_f32 {vr(X+i)}, {vr(X+i)}")
    return L
def add(d, k, items): d.setdefault(k, []); d[k] += items
def vread(V, off):
    return ["s_mov_b64 exec, s[46:47]", f"ds_read_b128 {vr(V,4)}, {vr(vVb)} offset:{off}", f"ds_read_b128 {vr(V+4,4)}, {vr(vVb)} offset:{off+1024}", "s_mov_b64 exec, -1"]
def adv():
    return [f"s_add_u32 s{sTO}, s{sTO}, 4096", f"s_and_b32 s{sTO}, s{sTO}, 0xffff", f"s_add_u32 s{sKO}, s{sTO}, s{sKB}", f"s_lshl_b32 s{sVO}, s{sTO}, 1"]

def body(opt, t0, vm, hooks=None, last=False):
    pos = opt.get("pos", (2, 5, 10)); vpos = opt.get("vpos", 13); kpos = opt.get("kpos", 13)
    hooks = hooks or {}
    L = []
    if t0 >= 20 and opt.get("alt"):
        b = (t0 - 20) // 4
        hooks = dict(hooks)
        def mk(f0, b=b):
            hi = b & 1
            return lambda vm: [f"s_cmp_eq_u32 s{sHD}, {hi}", f"s_cbranch_scc1 alt_hi{b}", "s_setprio 0", f"s_branch alt_done{b}", f"alt_hi{b}:", "s_setprio 1", f"alt_done{b}:"] + (f0(vm) if f0 else [])
        hooks[(0, 'A', 0)] = mk(hooks.get((0, 'A', 0)))
    for j in range(4):
        K0 = KR + 4 * j; K1 = KR + 4 * ((j + 1) & 3)
        V0 = VR + 8 * (j & 1); V1 = VR + 8 * ((j + 1) & 1)
        ex = {'A': {}, 'B': {}}
        fin = last and j == 3
        for ph in 'AB':
            for i in range(16):
                if ph == 'A' and i == vpos and not fin:
                    add(ex['A'], i, ([f"v_add_u32 {vr(vVb)}, s{sVO}, {vr(vV)}"] if j == 3 else []) + vread(V1, ((j + 1) & 3) * 2048))
                if ph == 'A' and i == pos[2]: add(ex['A'], i, ["s_waitcnt lgkmcnt(0)"])
                if ph == 'B' and i == pos[1]: add(ex['B'], i, vm.wait(f"K{t0+j+1}"))
                if ph == 'B' and i == kpos and not last:
                    add(ex['B'], i, [f"buffer_load_dwordx4 {vr(K0,4)}, {vr(vK)}, {WS}, s{sKO} offen offset:{1024*j} {'sc1' if t0 < opt.get('kplain', 99) else opt.get('kflag', '')}"]); vm.issue(f"K{t0+j+4}")
                if ph == 'B' and i == max(14, kpos) and j == 3 and not last: add(ex['B'], i, adv())
                if (j, ph, i) in hooks: add(ex[ph], i, hooks[(j, ph, i)](vm))
        L += step(SX, SY, OA, OB, K0, QB, V0, V1 + 4, ex['A'], pos)
        B = step(SY, SX, OB, OA, K1, QA, V0, V0 + 4, ex['B'], pos)
        if fin: B = [x for x in B if not x.startswith(qk(SX, K1, QA))]
        L += B
    return L

def spin(lab, issue, test, sl=None):
    return [f"s_cbranch_scc1 {lab}_ok", f"s_mov_b32 s{sSPIN}, 0", f"{lab}_spin:", f"s_add_u32 s{sSPIN}, s{sSPIN}, 1", f"s_cmp_gt_u32 s{sSPIN}, 0x1000000",
            f"s_cbranch_scc1 {lab}_ok"] + ([f"s_sleep {sl}"] if sl is not None else []) + issue + ["s_waitcnt vmcnt(0)"] + test + [f"s_cbranch_scc0 {lab}_spin", f"{lab}_ok:"]
def ptest(s, r): return [f"v_cmp_eq_u32 vcc, s{s}, {vr(r)}", "s_nop 1", "s_cmp_eq_u64 vcc, -1"]
def vdma(c, vm):
    L = [f"s_add_u32 s30, s{sRB}, {c}", "s_and_b32 s30, s30, 7", "s_lshl_b32 s30, s30, 14", f"s_add_u32 m0, s30, s{sV0}", f"s_add_u32 s30, s30, s{sV1}"]
    for i in range(2): L.append(f"buffer_load_dwordx4 {vr(vK)}, {WS}, s30 offen offset:{1024*i} sc1 lds")
    vm.issue(f"V{c}", 2)
    return L

def only(hd, lab, L):
    return [f"s_cmp_lg_u32 s{sHD}, {hd}", f"s_cbranch_scc1 {lab}"] + L + [f"{lab}:"]

def own_chunk(opt, vm):
    pos = opt.get("pos", (2, 5, 10)); vpos = opt.get("vpos", 13)
    sy = opt.get("sync", ((2, 4, 5), (0, 4, 5)))
    up, down = opt.get("ownprio", (0, 5))
    out = []
    poll1 = [f"buffer_load_dword {vr(vT)}, {vr(vT+1)}, {WS}, s{sFL} offen sc1"]
    def publish(n):
        return [f"v_mov_b32 {vr(vT+2)}, 1", "s_waitcnt vmcnt(0)", "s_mov_b64 exec, 1", f"ds_add_rtn_u32 {vr(vT+2)}, {vr(vCn)}, {vr(vT+2)}",
                f"s_lshl_b32 s29, s{sRB}, 7", f"v_mov_b32 {vr(vT+3)}, s29", f"s_lshl_b32 s29, s{sHP}, 7", f"v_mov_b32 {vr(vT+5)}, s29", f"v_mov_b32 {vr(vT+6)}, s{sNON2}", f"s_xor_b32 s29, s{sNON2}, s{sXCC}", f"v_mov_b32 {vr(vT+7)}, s29",
                "s_waitcnt lgkmcnt(0)", f"v_cmp_eq_u32 vcc, 7, {vr(vT+2)}", "s_and_saveexec_b64 s[58:59], vcc", f"s_cbranch_execz own_notlast{n}",
                f"buffer_store_dword {vr(vNon)}, {vr(vT+3)}, {WS}, s{sFL} offen sc1", f"buffer_store_dwordx2 {vr(vT+6,2)}, {vr(vT+5)}, {WS}, s{sFL2} offen sc1",
                f"own_notlast{n}:", "s_mov_b64 exec, -1"] + st_(opt, 7)
    def fetch(hd):
        L = ["s_waitcnt vmcnt(0)"] + ptest(sNON, vT) + spin(f"own{hd}", poll1, ptest(sNON, vT)) + st_(opt, 8)
        L += [f"buffer_load_dwordx4 {vr(KR+4*i,4)}, {vr(vK)}, {WS}, s{sKO} offen offset:{1024*i} sc1" for i in range(4)]
        if hd == 0:
            L += [f"s_add_u32 s30, s{sRB}, 1", "s_and_b32 s30, s30, 7", "s_lshl_b32 s30, s30, 14", f"s_lshl_b32 s29, s{sG}, 12", "s_add_u32 s30, s30, s29", "s_mov_b32 m0, s30", f"s_add_u32 s30, s30, s{sVB}"]
            L += [f"buffer_load_dwordx4 {vr(vK)}, {WS}, s30 offen offset:{1024*i} sc1 lds" for i in range(4)]
        return L
    for j in range(8):
        K0 = KO + 4 * (j & 1); K1 = (KO + 4 * ((j + 1) & 1)) if j < 7 else KR
        V0 = VR + 8 * (j & 1); V1 = VR + 8 * ((j + 1) & 1)
        exA = {}; exB = {}
        pre = []
        for hd in (0, 1):
            tf, tp, tc = sy[hd]
            L = []
            if j == tf: L += publish(hd)
            if j == tp: L += [f"s_add_u32 s29, s{sRB}, 1", "s_and_b32 s29, s29, 7", "s_lshl_b32 s29, s29, 7", f"v_mov_b32 {vr(vT+1)}, s29"] + poll1
            if j == tc: L += fetch(hd)
            if hd == 1 and j == up and up != down: L += ["s_setprio 1"]
            if L: pre += only(hd, f"own_skip{j}_{hd}", L)
        if j == down and up != down: pre += ["s_setprio 0"]
        late = opt.get("latebar", 1)
        if j == 7:
            if not late: pre += ["s_waitcnt vmcnt(0)", "s_barrier"] + ([] if opt.get("loopst") else st_(opt, 9))
            pre += [f"v_add_u32 {vr(vVb)}, s{sVO}, {vr(vV)}", f"s_lshl_b32 s{sV0}, s{sW}, 11", f"s_add_u32 s{sV1}, s{sVB}, s{sV0}"]
            if late: add(exB, pos[1], ["s_waitcnt vmcnt(3)"])
        if opt.get("tilest"):
            i = [1, 2, 3, 4, 5, 11, 12, 13][j]
            pre = [f"s_memtime s[{60+2*i}:{61+2*i}]"] + pre
        add(exA, 0, pre)
        rd = []
        if j < 7: rd += [f"ds_read_b128 {vr(K1,4)}, {vr(vKl)} offset:{1024*(j+1)}"]
        vp = min(vpos, 8) if j < 7 else vpos
        if not (late and j == 7): add(exA, vp, rd + vread(V1, (j + 1) * 2048 if j < 7 else 0))
        if j == 0 or j == 7: add(exA, pos[2], ["s_waitcnt lgkmcnt(3)" if (j == 0 and vp < pos[2]) else "s_waitcnt lgkmcnt(0)"])
        if j < 7: add(exB, pos[1], ["s_waitcnt lgkmcnt(0)"])
        if j == 7: add(exB, 14, adv())
        out += step(SX, SY, OA, OB, K0, QB, V0, V1 + 4, exA, pos)
        out += step(SY, SX, OB, OA, K1, QA, V0, V0 + 4, exB, pos)
    vm.ops = []
    return out

def wo_dma(r, vm):
    L = [f"s_mov_b32 m0, s{sST}"]
    for i in range(4):
        L += [f"s_add_u32 s41, s{sWB}, {r*65536 + i*15360}", f"buffer_load_dwordx4 {vr(vWs)}, {WW}, s41 offen offset:{1024*i} lds"]
    vm.issue(f"W{r}", 4)
    return L
def wo_read(r, sg):
    return [f"ds_read_b64_tr_b16 {vr(WO + ((2*r+sg)*2+jt)*4 + 2*u, 2)}, {vr(vWr+jt)} offset:{sg*2048 + u*512}" for jt in range(2) for u in range(2)]

def phase2(a, opt):
    t = vT
    L = ["s_waitcnt lgkmcnt(2)", qk(SX, KO, QA), "s_nop 7", "s_nop 3"] + ["s_nop 0"] * opt.get("shift", 0)
    vm = VM()
    L += ["; tiles 0..7: this workgroup's own keys (K from LDS); publish K/V, fetch the next block's"] + own_chunk(opt, vm) + st_(opt, 10) + ["; tiles 8..11: wait for the whole group's flags"]
    poll2 = [f"v_and_b32 {vr(vT+1)}, 0x380, {vr(vFl)}", f"buffer_load_dword {vr(vT)}, {vr(vT+1)}, {WS}, s{sFL} offen sc1"]
    first8 = (["s_waitcnt vmcnt(0)", "s_barrier"] + ([] if opt.get("loopst") else st_(opt, 9)) + vread(VR, 0)) if opt.get("latebar", 1) else []
    def p2(vm): vm.issue("P2"); return first8 + poll2
    roll = opt.get("roll", 0)
    def stage(b):
        h = {}
        if not roll: return h
        for j in (0, 2):
            r = 2 * b + j // 2
            h[(j, 'A', 1)] = lambda vm, r=r: wo_dma(r, vm)
            h[(j + 1, 'A', 6)] = lambda vm, r=r: vm.wait(f"W{r}") + wo_read(r, 0)
            h[(j + 1, 'A', 8)] = lambda vm, r=r: wo_read(r, 1)
        return h
    assert not roll
    L += body(opt, 8, vm, {(0, 'A', 0): p2})
    L += vm.wait("P2") + ptest(sNON, vT) + spin("all", poll2[1:], ptest(sNON, vT))
    if opt.get("inv") is not None:
        L += [f"s_cmp_lg_u32 s{sW}, {opt['inv']}", "s_cbranch_scc1 att_noinv", "buffer_inv sc1", "att_noinv:"]
    L += [f"s_add_u32 s29, s{sRB}, s{sW}", "s_cmp_lg_u32 s29, 0", "s_cbranch_scc1 att_noepoch", "s_mov_b64 exec, 1", f"v_mov_b32 {vr(t+2)}, 1024",
          f"buffer_store_dword {vr(vNon)}, {vr(t+2)}, {WS}, s{sFL} offen sc1", "s_mov_b64 exec, -1", "att_noepoch:"]
    L += ["; tiles 12..15: the remaining V blocks stream into LDS"]
    L += body(opt, 12, vm, {(0, 'A', 0): lambda vm: vdma(2, vm), (1, 'A', 0): lambda vm: vdma(3, vm) + vdma(4, vm), (2, 'A', 0): lambda vm: vdma(5, vm) + vdma(6, vm),
                            (3, 'A', 0): lambda vm: vm.wait("V2") + ["s_barrier"] + vdma(7, vm)})
    L += ["; tiles 16..19: wo towards L2; partners of the o exchange have marked their slots; are they all on this die?"]
    def wo_touch(vm):
        vm.issue("T")
        mem = [f"s_lshr_b32 s29, s{sHP}, 1", "s_and_b32 s29, s29, 1", "s_lshl_b32 s29, s29, 3", f"s_add_u32 s29, s29, s{sRB}"] if opt.get("map", 1) == 0 else \
              [f"s_and_b32 s29, s{sRB}, 1", "s_lshl_b32 s29, s29, 3", f"s_lshr_b32 s30, s{sHP}, 1", "s_add_u32 s29, s29, s30"]
        return mem + ["s_lshl_b32 s29, s29, 3", f"s_add_u32 s29, s29, s{sW}", "s_lshl_b32 s29, s29, 12",
                f"s_and_b32 s30, s{sHP}, 1", "s_lshl_b32 s30, s30, 9", "s_add_u32 s29, s29, s30",
                f"v_lshrrev_b32 {vr(t+2)}, 2, v0", f"v_lshlrev_b32 {vr(t+2)}, 10, {vr(t+2)}", f"v_and_b32 {vr(t+3)}, 3, v0", f"v_lshl_add_u32 {vr(t+2)}, {vr(t+3)}, 7, {vr(t+2)}",
                "s_mov_b64 exec, 0xffff", f"buffer_load_dword {vr(t+4)}, {vr(t+2)}, {WW}, s29 offen", "s_mov_b64 exec, -1"]
    poll3 = [f"buffer_load_dwordx2 {vr(vT,2)}, {vr(vFl)}, {WS}, s{sFL2} offen sc1"]
    def p3(vm): vm.issue("P3"); return poll3
    L += body(opt, 16, vm, {(0, 'B', 14): wo_touch, (0, 'A', 0): p3})
    L += vm.wait("P3") + ptest(sNON2, vT) + spin("mrk", poll3, ptest(sNON2, vT))
    L += [f"s_xor_b32 s29, s{sNON2}, s{sXCC}"] + ptest(29, vT + 1) + [f"s_cselect_b32 s{sFAST}, 1, 0"]
    L += [f"s_add_u32 s29, s{sHP}, s{sW}", "s_cmp_lg_u32 s29, 0", "s_cbranch_scc1 att_noepoch2", "s_mov_b64 exec, 1", f"v_mov_b32 {vr(t+2)}, 2048", f"v_mov_b32 {vr(t+3)}, s{sNON2}",
          f"buffer_store_dword {vr(t+3)}, {vr(t+2)}, {WS}, s{sFL2} offen sc1", "s_mov_b64 exec, -1", "att_noepoch2:"]
    L += ["s_barrier"]
    L += st_(opt, 9) if opt.get("loopst") else []
    prio = opt.get("prio", 3)
    ptiles = opt.get("ptiles", 4 * prio)
    if prio: L += [f"s_cmp_eq_u32 s{sHD}, 0", "s_cbranch_scc1 att_noprio", "s_setprio 1", "att_noprio:"]
    L += ["; tiles 20..63; wo fragments are staged through LDS into v4..v131 on the way"]
    w0 = opt.get("wo0", 0)
    for b in range(11):
        hk = {}
        r = b - w0
        if opt.get("nostage"): r = 99
        if 1 <= r <= 8:
            hk[(0, 'A', 0)] = lambda vm, r=r: vm.wait(f"W{r-1}") + wo_read(r - 1, 0)
            hk[(0, 'A', 7)] = lambda vm, r=r: wo_read(r - 1, 1)
        if 0 <= r < 8:
            hk[(1, 'A', 0)] = lambda vm, r=r: wo_dma(r, vm)
        if opt.get("idle") and b == 3: hk[(2, 'A', 0)] = lambda vm: ["s_barrier", f"s_sleep {opt['idle']}", "s_barrier"]
        if prio and b == (44 - ptiles) // 4: hk[((44 - ptiles) % 4, 'B', 0)] = lambda vm: ["s_setprio 0"]
        L += body(opt, 20 + 4 * b, vm, hk, last=(b == 10))
    L += st_(opt, 11)
    L += ["s_nop 1", smf(OB, VR + 12, SY + 8)]
    assert vm.ops == [], vm.ops
    emit(a, L)
    a(f"s_mov_b32 s29, {f32hex(2.0**-80)}\ns_mov_b32 s30, {f32hex(2.0**110)}\ns_mov_b32 s31, 0x7f800000")
    a(f"v_cmp_le_f32 s[58:59], s29, {vr(OA+8)}\nv_cmp_ge_f32 vcc, s30, {vr(OA+8)}")
    if opt.get("lean", 0):
        a(f"v_pk_mul_f32 {vr(t,2)}, {vr(OA,2)}, 0 op_sel_hi:[1,0]")
        for i in range(2, 8, 2): a(f"v_pk_fma_f32 {vr(t,2)}, {vr(OA+i,2)}, 0, {vr(t,2)} op_sel_hi:[1,0,1]")
        a(f"s_and_b64 s[58:59], s[58:59], vcc\ns_nop 3\nv_cmp_le_f32 vcc, s29, {vr(OB+8)}")
        for i in range(0, 8, 2): a(f"v_pk_fma_f32 {vr(t,2)}, {vr(OB+i,2)}, 0, {vr(t,2)} op_sel_hi:[1,0,1]")
        a("s_and_b64 s[58:59], s[58:59], vcc")
        a(f"v_cmp_ge_f32 vcc, s30, {vr(OB+8)}\ns_mov_b32 s{sCNT}, 0\ns_nop 0\ns_and_b64 s[58:59], s[58:59], vcc")
        a(f"v_cmp_o_f32 vcc, {vr(t)}, {vr(t+1)}\ns_nop 1\ns_and_b64 s[58:59], s[58:59], vcc")
    else:
        a(f"v_add_f32 {vr(t)}, abs({vr(OA)}), abs({vr(OA+1)})")
        for i in range(2, 8): a(f"v_add_f32 {vr(t)}, {vr(t)}, abs({vr(OA+i)})")
        a("s_and_b64 s[58:59], s[58:59], vcc")
        a(f"v_cmp_le_f32 vcc, s29, {vr(OB+8)}")
        for i in range(8): a(f"v_add_f32 {vr(t)}, {vr(t)}, abs({vr(OB+i)})")
        a("s_and_b64 s[58:59], s[58:59], vcc")
        a(f"v_cmp_ge_f32 vcc, s30, {vr(OB+8)}\ns_nop 1\ns_and_b64 s[58:59], s[58:59], vcc")
        a(f"v_cmp_gt_f32 vcc, s31, {vr(t)}\ns_nop 1\ns_and_b64 s[58:59], s[58:59], vcc")
    a("s_cmp_eq_u64 s[58:59], -1")
    if opt.get("forcefb"): a("s_branch att_fallback")
    a("s_cbranch_scc0 att_fallback")
    a.label("att_finish")
    a(f"v_rcp_f32 {vr(t)}, {vr(OA+8)}\nv_rcp_f32 {vr(t+1)}, {vr(OB+8)}\ns_mov_b32 s29, -2")
    for n, (O, P, r, so) in enumerate(((OA, SX, t, sOA), (OB, SX + 4, t + 1, sOB))):
        if opt.get("lean", 0):
            for i in range(0, 8, 2): a(f"v_pk_mul_f32 {vr(O+i,2)}, {vr(O+i,2)}, {vr(t,2)} op_sel:[0,{n}] op_sel_hi:[1,{n}]")
        else:
            for i in range(8): a(f"v_mul_f32 {vr(O+i)}, {vr(O+i)}, {vr(r)}")
        for i in range(4): a(f"v_cvt_pk_bf16_f32 {vr(P+i)}, {vr(O+2*i)}, {vr(O+2*i+1)}")
        if opt.get("lean", 0): a(f"s_cmp_eq_u32 s{sCNT}, 0\ns_cbranch_scc1 att_nomin{n}")
        for i in range(4): a(f"v_min_u32 {vr(P+i)}, s29, {vr(P+i)}")
        if opt.get("lean", 0): a(f"att_nomin{n}:")
        st = f"buffer_store_dwordx4 {vr(P,4)}, {vr(vOs)}, {WS}, s{so} offen"
        if opt.get("fast", 1):
            a(f"s_cmp_lg_u32 s{sFAST}, 0\ns_cbranch_scc1 att_ofast{n}\n{st} sc1\ns_branch att_odone{n}\natt_ofast{n}:\n{st} {opt.get('fastf','')}\natt_odone{n}:")
        else:
            a(st + " sc1")
    if opt.get("clean"):
        for i in range(8): a(f"v_mov_b32 {vr(OB+i)}, {vr(SX+i)}")
    emit(a, st_(opt, 12))

def fallback(a, opt):
    t = vT
    a.label("att_fallback")
    a("s_waitcnt vmcnt(0) lgkmcnt(0)\ns_setprio 0")
    for nm, Q, O in (("a", QA, OA), ("b", QB, OB)):
        a(f"v_mov_b32 {vr(t)}, 0xff800000\ns_mov_b32 s{sCNT}, 0")
        a.label("fb_max" + nm)
        a(f"s_lshl_b32 s29, s{sCNT}, 10\ns_add_u32 s29, s29, s{sKB}")
        a(f"buffer_load_dwordx4 {vr(KR,4)}, {vr(vK)}, {WS}, s29 offen sc1\ns_waitcnt vmcnt(0)")
        a(qk(SX, KR, Q, "0")); a("s_nop 7\ns_nop 7")
        for i in range(0, 16, 2): a(f"v_max3_f32 {vr(t)}, {vr(t)}, {vr(SX+i)}, {vr(SX+i+1)}")
        a(f"s_add_u32 s{sCNT}, s{sCNT}, 1\ns_cmp_lt_u32 s{sCNT}, 64\ns_cbranch_scc1 fb_max{nm}")
        a(f"v_mov_b32 {vr(t+1)}, {vr(t)}\ns_nop 1\nv_permlane32_swap_b32 {vr(t)}, {vr(t+1)}")
        for i in range(16): a(f"v_min_f32 {vr(SY+i)}, -{vr(t)}, -{vr(t+1)}")
        for i in range(16): a(f"v_mov_b32 {vr(O+i)}, 0")
        a(f"s_mov_b32 s{sCNT}, 0")
        a.label("fb_sum" + nm)
        a(f"s_lshl_b32 s29, s{sCNT}, 10\ns_add_u32 s29, s29, s{sKB}\ns_lshl_b32 s30, s{sCNT}, 11\nv_add_u32 {vr(vVb)}, s30, {vr(vV)}")
        a(f"buffer_load_dwordx4 {vr(KR,4)}, {vr(vK)}, {WS}, s29 offen sc1")
        emit(a, vread(VR, 0))
        a("s_waitcnt vmcnt(0) lgkmcnt(0)")
        a(qk(SX, KR, Q, vr(SY, 16))); a("s_nop 7\ns_nop 7")
        for i in range(16): a(f"v_exp_f32 {vr(SX+i)}, {vr(SX+i)}")
        a("s_nop 1")
        a(smf(O, VR, SX)); a(smf(O, VR + 4, SX + 8))
        a(f"s_add_u32 s{sCNT}, s{sCNT}, 1\ns_cmp_lt_u32 s{sCNT}, 64\ns_cbranch_scc1 fb_sum{nm}")
        a("s_nop 7\ns_nop 7")
    a("s_branch att_finish")

def phase3(a, opt):
    t = vT
    G, F, acc = KR, VR, OA
    a(f"s_lshr_b32 s29, s{sHP}, 1\ns_lshl_b32 s30, s{sRB}, 3\ns_add_u32 s44, s29, s30")
    a(f"s_lshl_b32 s30, s{sP}, 6\ns_add_u32 s30, s30, s44\ns_lshl_b32 s30, s30, 15\ns_lshl_b32 s31, s{sW}, 12\ns_add_u32 s30, s30, s31\ns_add_u32 s45, s30, {WS_O}")
    if opt.get("wb2"):
        a(f"s_and_b32 s29, s{sHP}, {opt['wb2']}\ns_xor_b32 s30, s{sW}, 4\ns_add_u32 s29, s29, s30\ns_cmp_lg_u32 s29, 0\ns_cbranch_scc1 prj_nowb2\ns_sleep {opt.get('wbs', 4)}\nbuffer_wbl2 sc1\nprj_nowb2:")
    gather = [f"buffer_load_dwordx4 {vr(G+4*i,4)}, {vr(vK)}, {WS}, s45 offen offset:{1024*i} sc1" for i in range(4)]
    emit(a, gather)
    a(f"v_add_u32 {vr(t+2)}, s{sST}, {vr(vK)}\nv_add_u32 {vr(t+3)}, {LDS_ST}, {vr(vK)}")
    a(f"v_and_b32 {vr(t+4)}, 15, v0\nv_lshlrev_b32 {vr(t+4)}, 11, {vr(t+4)}\nv_bfe_u32 {vr(t+1)}, v0, 4, 1\nv_lshl_add_u32 {vr(t+4)}, {vr(t+1)}, 5, {vr(t+4)}")
    a(f"v_lshrrev_b32 {vr(t+1)}, 5, v0\nv_lshl_add_u32 {vr(t+4)}, {vr(t+1)}, 4, {vr(t+4)}")
    a(f"s_lshl_b32 s29, s44, 16\ns_lshl_b32 s30, s{sP}, 10\ns_add_u32 s29, s29, s30\ns_add_u32 s52, s29, s{sWB}\ns_add_u32 s53, s52, 32768")
    test = [f"v_max3_u32 {vr(t)}, {vr(G)}, {vr(G+1)}, {vr(G+2)}"] + [f"v_max3_u32 {vr(t)}, {vr(t)}, {vr(G+i)}, {vr(G+i+1)}" for i in range(3, 15, 2)]
    test += [f"v_max_u32 {vr(t)}, {vr(t)}, {vr(G+15)}", f"v_cmp_ne_u32 vcc, -1, {vr(t)}", "s_nop 1", "s_cmp_eq_u64 vcc, -1"]
    if not opt.get("pipe"):
        emit(a, ["s_waitcnt vmcnt(0)"] + st_(opt, 13) + test + spin("prj", gather, test, opt.get("psleep")))
        emit(a, st_(opt, 2))
        for i in range(4): a(f"ds_write_b128 {vr(t+2)}, {vr(G+4*i,4)} offset:{1024*i}")
    else:
        import re
        G2 = SY
        def on(L, g):
            out = []
            for x in L:
                x = re.sub(r"v\[(\d+):(\d+)\]", lambda m: f"v[{int(m.group(1))-G+g}:{int(m.group(2))-G+g}]" if G <= int(m.group(1)) < G + 16 else m.group(0), x)
                x = re.sub(r"v(\d+)\b", lambda m: f"v{int(m.group(1))-G+g}" if G <= int(m.group(1)) < G + 16 else m.group(0), x)
                out.append(x)
            return out
        sl = opt["pipe"]
        emit(a, [f"s_mov_b32 s{sSPIN}, 0", "prj_spin:", f"s_sleep {sl}"] + on(gather, G2) + ["s_waitcnt vmcnt(4)"] + test + ["s_cbranch_scc1 prj_g1"])
        emit(a, [f"s_sleep {sl}"] + gather + ["s_waitcnt vmcnt(4)"] + on(test, G2) + ["s_cbranch_scc1 prj_g2"])
        emit(a, [f"s_add_u32 s{sSPIN}, s{sSPIN}, 1", f"s_cmp_gt_u32 s{sSPIN}, 0x1000000", "s_cbranch_scc0 prj_spin", "prj_g2:"])
        for i in range(4): a(f"ds_write_b128 {vr(t+2)}, {vr(G2+4*i,4)} offset:{1024*i}")
        a("s_branch prj_w\nprj_g1:")
        for i in range(4): a(f"ds_write_b128 {vr(t+2)}, {vr(G+4*i,4)} offset:{1024*i}")
        a("prj_w:\ns_waitcnt vmcnt(0)")
    a("s_waitcnt lgkmcnt(0)\ns_barrier")
    if opt.get("wb"):
        m = {1: f"s_lshr_b32 s29, s2, 3\ns_add_u32 s29, s29, s{sW}", 2: f"s_mov_b32 s29, s{sW}", 3: f"s_and_b32 s29, s{sHP}, 15\ns_add_u32 s29, s29, s{sW}"}[opt["wb"]]
        a(m + "\ns_cmp_lg_u32 s29, 0\ns_cbranch_scc1 prj_nowb\nbuffer_wbl2 sc1\nprj_nowb:")
    if opt.get("tailst"): a("s_memrealtime s[68:69]")
    pv = opt.get("pv", 2)
    P = SX
    def finish(sub):
        L = [f"v_cvt_pk_bf16_f32 {vr(P+4*sub+2*jt+i)}, {vr(acc+8*sub+4*jt+2*i)}, {vr(acc+8*sub+4*jt+2*i+1)}" for jt in range(2) for i in range(2)]
        L += ["s_nop 1", f"v_permlane16_swap_b32 {vr(P+4*sub)}, {vr(P+4*sub+2)}", f"v_permlane16_swap_b32 {vr(P+4*sub+1)}, {vr(P+4*sub+3)}",
              f"buffer_store_dwordx4 {vr(P+4*sub,4)}, {vr(t+4)}, s[{SRD_O}:{SRD_O+3}], s{52+sub} offen sc1"]
        return L
    if pv == 1:
        FR = (VR, VR + 8, SY, SY + 8, KR, KR + 8, OB, OB + 8)
        Fr2 = lambda n: FR[n & 7]
        rd = lambda n: [f"ds_read_b128 {vr(Fr2(n)+4*sub,4)}, {vr(t+3)} offset:{n*2048 + sub*1024}" for sub in range(2)]
        for n in range(6): emit(a, rd(n))
        for n in range(0, 16, 2):
            a(f"s_waitcnt lgkmcnt({min(8, 2*(14-n))})")
            R = (rd(n + 6) + rd(n + 7)) if n + 6 < 16 else []
            k = 0
            for m in (n, n + 1):
                for sub in range(2):
                    for jt in range(2):
                        a(m16(acc + 8*sub + 4*jt, WO + (2*m+jt)*4, Fr2(m) + 4*sub, m == 0))
                        if k % 2 == 1 and R: a(R.pop(0))
                        k += 1
        if opt.get("tailst"): a("s_memrealtime s[70:71]")
        a("s_nop 7")
        emit(a, finish(0) + finish(1))
    else:
        FR = [VR + 4*i for i in range(4)] + [SY + 4*i for i in range(4)] + [KR + 4*i for i in range(4)] + [OB + 4*i for i in range(4)]
        rd = lambda q: f"ds_read_b128 {vr(FR[q & 15],4)}, {vr(t+3)} offset:{(q & 15)*2048 + (q >> 4)*1024}"
        for q in range(12): a(rd(q))
        fin0 = []
        for q0 in range(0, 32, 4):
            a(f"s_waitcnt lgkmcnt({min(8, 28 - q0)})")
            R = [rd(q) for q in range(q0 + 12, min(q0 + 16, 32))]
            if q0 == 24: fin0 = finish(0)
            for q in range(q0, q0 + 4):
                sub, m = q >> 4, q & 15
                for jt in range(2): a(m16(acc + 8*sub + 4*jt, WO + (2*m+jt)*4, FR[q & 15], m == 0))
                if R: a(R.pop(0))
                emit(a, fin0[:2]); fin0 = fin0[2:]
        if opt.get("tailst"): a("s_memrealtime s[70:71]")
        a("s_nop 7")
        emit(a, finish(1))
    emit(a, st_(opt, 3))

def kd(name, vgpr):
    return f""".amdhsa_kernel {name}
  .amdhsa_next_free_vgpr {vgpr}
  .amdhsa_next_free_sgpr 102
  .amdhsa_accum_offset {vgpr}
  .amdhsa_group_segment_fixed_size 0
  .amdhsa_kernarg_size 72
  .amdhsa_user_sgpr_count 2
  .amdhsa_user_sgpr_kernarg_segment_ptr 1
  .amdhsa_system_sgpr_workgroup_id_x 1
  .amdhsa_float_denorm_mode_32 3
.end_amdhsa_kernel
"""

DOC = """;
; Generated by my own script (register maps, counted waits and wait states are derived there).
"""

def build(opt):
    ref = open("cdna_kernels/" + NAME + ".s.ref").read().split("\n")
    hdr = [l for l in ref if l.startswith(";") and "@launch" not in l]
    out = "\n".join(hdr) + "\n; @launch grid=(256,1,1) block=(512,1,1) lds=163840\n" + DOC
    a = Asm()
    kn = NAME + "_kernel"
    a(f".globl {kn}\n.p2align 8\n.type {kn},@function")
    a.label(kn)
    if opt.get("stamp"):
        a("s_memrealtime s[88:89]"); emit(a, st_(opt, 0))
    a("; ---- ids, pointers ----"); prologue(a, kn, opt)
    a("; ==== phase 1: QKV projection ===="); phase1(a, opt)
    a("; ==== phase 2: attention ===="); phase2(a, opt)
    a("; ==== phase 3: output projection ===="); phase3(a, opt)
    errs = check_linear(a.lines, "main")
    dump_stamps(a, opt)
    a.label(kn + "_end")
    a("s_endpgm")
    n0 = len(a.lines)
    fallback(a, opt)
    a("code_end:")
    errs += check_linear(a.lines[n0:], "fallback")
    for e in errs[:8]: print("HAZARD", len(errs), e, file=sys.stderr)
    out += '.amdgcn_target "amdgcn-amd-amdhsa--gfx950"\n.text\n' + a.text()
    out += '.section .rodata,"a"\n.p2align 6\n' + kd(kn, 256)
    return out

if __name__ == "__main__":
    import json
    opt = json.loads(sys.argv[2]) if len(sys.argv) > 2 else {}
    open(sys.argv[1], "w").write(build(opt))
```
